```python
import torch

def _softmax(x, axis=-1):
    return torch.softmax(x, dim=axis)

def _gelu(x):
    return torch.nn.functional.gelu(x, approximate='tanh')

def _silu(x):
    return torch.nn.functional.silu(x)

def _sigmoid(x):
    return torch.sigmoid(x)

def _layernorm(x, axis=-1, eps=1e-05):
    m = x.mean(dim=axis, keepdim=True)
    v = x.var(dim=axis, keepdim=True, unbiased=False)
    return (x - m) / torch.sqrt(v + eps)

def _scatter_add(tgt, idx, src, axis=0):
    return tgt.clone().index_add_(axis, idx, src)

def _segment_sum(src, seg, n):
    out = torch.zeros((n,) + src.shape[1:], dtype=src.dtype)
    return out.index_add_(0, seg, src)

def _pad(x, pw):
    flat = tuple((v for pair in reversed(pw) for v in pair))
    return torch.nn.functional.pad(x, flat)
kernel_name = 'adaLN_cond__ssm_conv_s4d__glu_gated_swiglu__prompt'

def setup_inputs():

    _w = lambda a: (lambda t: t.to(torch.bfloat16) if t.is_floating_point() else t)(torch.as_tensor(a))

    def _A_setup():
        Bsz, L, D, N = (1, 2048, 448, 256)
        return {'u': _w((lambda *s: torch.randn(*s, dtype=torch.bfloat16) * 0.05)(Bsz, L, D)), 'log_A_real': _w((lambda *s: torch.randn(*s, dtype=torch.bfloat16) * 3.2)(D, N) * 0.5), 'A_imag': _w((lambda *s: torch.randn(*s, dtype=torch.bfloat16) * 0.05)(D, N) * 3.14), 'C_real': _w((lambda *s: torch.randn(*s, dtype=torch.bfloat16) * 0.2)(D, N) / N ** 0.5), 'C_imag': _w((lambda *s: torch.randn(*s, dtype=torch.bfloat16) * 0.2)(D, N) / N ** 0.5), 'log_dt': _w((lambda *s: torch.randn(*s, dtype=torch.bfloat16) * 0.05)(D) * 0.5 - 4.0), 'D_skip': _w((lambda *s: torch.randn(*s, dtype=torch.bfloat16) * 0.05)(D))}
    _A_in = _A_setup()

    def _B_setup():
        B, S, D, F = (1, 2048, 448, 1792)
        return {'x': _w((lambda *s: torch.randn(*s, dtype=torch.bfloat16) * 0.05)(B, S, D)), 'w1': _w((lambda *s: torch.randn(*s, dtype=torch.bfloat16) * 0.4)(D, F) * (2.0 / D) ** 0.5), 'w3': _w((lambda *s: torch.randn(*s, dtype=torch.bfloat16) * 0.4)(D, F) * (2.0 / D) ** 0.5), 'w2': _w((lambda *s: torch.randn(*s, dtype=torch.bfloat16) * 0.4)(F, D) * (2.0 / F) ** 0.5)}
    _B_in = _B_setup()
    return {'A_u': _A_in['u'], 'A_log_A_real': _A_in['log_A_real'], 'A_A_imag': _A_in['A_imag'], 'A_C_real': _A_in['C_real'], 'A_C_imag': _A_in['C_imag'], 'A_log_dt': _A_in['log_dt'], 'A_D_skip': _A_in['D_skip'], 'B_x': _B_in['x'], 'B_w1': _B_in['w1'], 'B_w3': _B_in['w3'], 'B_w2': _B_in['w2'], 'c': _w((lambda *s: torch.randn(*s, dtype=torch.bfloat16) * 0.4)(1, 448) * 8.0), 'w_mod': _w((lambda *s: torch.randn(*s, dtype=torch.bfloat16) * 0.4)(448, 6 * 448) * 448 ** (-0.5) * 8.0)}

def reference(A_u, A_log_A_real, A_A_imag, A_C_real, A_C_imag, A_log_dt, A_D_skip, B_x, B_w1, B_w3, B_w2, c, w_mod):

    def _A_ref(u, log_A_real, A_imag, C_real, C_imag, log_dt, D_skip):
        L = u.shape[1]
        dt = torch.exp(log_dt)
        A = -torch.exp(log_A_real) + 1j * A_imag
        C = (C_real + 1j * C_imag) * dt[:, None]
        pos = (lambda x, dt: x.to(dt))(torch.arange(L), log_dt.dtype)
        P = torch.exp((A * dt[:, None])[:, :, None] * pos[None, None, :])
        K = 2.0 * torch.einsum('dn,dnl->dl', C, P).real
        L2 = 2 * L
        u_t = (lambda x, *d: x.permute(*d))(u, 0, 2, 1)
        Kf = (lambda x, *a, **k: torch.fft.rfft(x.float(), *a, **k))(K, L2)
        Uf = (lambda x, *a, **k: torch.fft.rfft(x.float(), *a, **k))(u_t, L2)
        y = (lambda x, *a, **k: torch.fft.irfft(x, *a, **k).to(torch.bfloat16))(Uf * Kf[None, :, :], L2)[:, :, :L]
        y = (lambda x, *d: x.permute(*d))(y, 0, 2, 1)
        return y + u * D_skip[None, None, :]

    def _B_ref(x, w1, w3, w2):
        gate = torch.einsum('bsd,df->bsf', x, w1)
        up = torch.einsum('bsd,df->bsf', x, w3)
        h = _silu(gate) * up
        out = torch.einsum('bsf,fd->bsd', h, w2)
        return out
    x = A_u
    mod = (_silu(c) @ w_mod).reshape(c.shape[0], 6, 1, -1)
    sa, ca, ga, sb, cb, gb = (mod[:, 0].clone(), mod[:, 1].clone(), mod[:, 2].clone(), mod[:, 3].clone(), mod[:, 4].clone(), mod[:, 5].clone())
    h = _layernorm(x, axis=-1) * (1 + ca) + sa
    x = x + ga * _A_ref(h, A_log_A_real, A_A_imag, A_C_real, A_C_imag, A_log_dt, A_D_skip)
    h = _layernorm(x, axis=-1) * (1 + cb) + sb
    x = x + gb * _B_ref(h, B_w1, B_w3, B_w2)
    return x
```

```python
import re

TRANS = ("v_exp_f32", "v_log_f32", "v_rcp_f32", "v_rsq_f32", "v_sqrt_f32", "v_sin_f32", "v_cos_f32",
         "v_rcp_iflag_f32")

_reg_re = re.compile(r"^(-|abs\()?\|?([vas])(\d+)\|?\)?$")
_rng_re = re.compile(r"^(-)?([vas])\[(\d+):(\d+)\]$")


def regs_of(tok):
    tok = tok.strip()
    m = _rng_re.match(tok)
    if m:
        return {(m.group(2), i) for i in range(int(m.group(3)), int(m.group(4)) + 1)}
    m = _reg_re.match(tok)
    if m:
        return {(m.group(2), int(m.group(3)))}
    if tok in ("vcc", "vcc_lo", "vcc_hi"):
        return {("vcc", 0)}
    if tok in ("exec", "exec_lo", "exec_hi"):
        return {("exec", 0)}
    if tok == "m0":
        return {("m0", 0)}
    return set()


def split_ops(s):
    out, depth, cur = [], 0, ""
    for ch in s:
        if ch in "[(":
            depth += 1
        if ch in "])":
            depth -= 1
        if ch == "," and depth == 0:
            out.append(cur.strip())
            cur = ""
        else:
            cur += ch
    if cur.strip():
        out.append(cur.strip())
    return out


class Inst:
    __slots__ = ("text", "op", "wr", "rd", "cls", "passes", "srcc", "dpp", "ab", "storedata", "nops", "lds_dma")

    def __init__(self, text):
        self.text = text
        t = text.split(";")[0].strip()
        parts = t.split(None, 1)
        op = parts[0]
        self.op = op
        rest = parts[1] if len(parts) > 1 else ""
        ops = split_ops(rest)
        mods = ""
        if ops:
            last = ops[-1].split(None, 1)
            if len(last) > 1:
                ops[-1] = last[0]
                mods = last[1]
        self.wr, self.rd = set(), set()
        self.cls = "other"
        self.passes = 0
        self.srcc = set()
        self.ab = set()
        self.storedata = set()
        self.dpp = ("_dpp" in op) or any(k in mods for k in ("row_shr", "row_shl", "row_ror", "row_bcast", "quad_perm", "row_mirror", "row_half_mirror", "wave_"))
        self.nops = 1
        self.lds_dma = False
        base = op.replace("_e32", "").replace("_e64", "").replace("_dpp", "").replace("_sdwa", "")
        if op == "s_nop":
            self.cls = "nop"
            self.nops = int(ops[0], 0) + 1
            return
        if op.startswith("v_mfma"):
            self.cls = "mfma"
            self.passes = 8 if "32x32x16" in op else 4
            self.wr = regs_of(ops[0])
            self.ab = regs_of(ops[1]) | regs_of(ops[2])
            self.srcc = regs_of(ops[3])
            self.rd = self.ab | self.srcc
            return
        if op.startswith("v_"):
            self.cls = "trans" if base in TRANS else "valu"
            if base.startswith("v_cmp"):
                self.wr = regs_of(ops[0])
                for o in ops[1:]:
                    self.rd |= regs_of(o)
            elif base in ("v_readlane_b32", "v_readfirstlane_b32"):
                self.cls = "readlane"
                self.wr = regs_of(ops[0])
                for o in ops[1:]:
                    self.rd |= regs_of(o)
            elif base.startswith("v_permlane"):
                self.cls = "permlane"
                self.wr = regs_of(ops[0]) | regs_of(ops[1])
                self.rd = set(self.wr)
            elif base in ("v_add_co_u32", "v_sub_co_u32", "v_addc_co_u32", "v_subb_co_u32"):
                self.wr = regs_of(ops[0]) | regs_of(ops[1])
                for o in ops[2:]:
                    self.rd |= regs_of(o)
            else:
                self.wr = regs_of(ops[0])
                for o in ops[1:]:
                    self.rd |= regs_of(o)
                if base in ("v_fmac_f32", "v_dot2c_f32_bf16", "v_writelane_b32") or self.dpp:
                    self.rd |= self.wr
                if base == "v_cndmask_b32" and len(ops) == 3:
                    self.rd |= {("vcc", 0)}
            return
        if op.startswith("buffer_") or op.startswith("global_"):
            self.cls = "vmem"
            if " lds" in (" " + mods) or "_lds_" in op:
                self.lds_dma = True
                for o in ops:
                    self.rd |= regs_of(o)
                self.rd |= {("m0", 0)}
            elif "load" in op:
                self.wr = regs_of(ops[0])
                for o in ops[1:]:
                    self.rd |= regs_of(o)
            else:
                for o in ops:
                    self.rd |= regs_of(o)
                if "x4" in op or "x3" in op:
                    self.storedata = regs_of(ops[0]) if op.startswith("buffer_") else regs_of(ops[1])
            return
        if op.startswith("ds_"):
            self.cls = "ds"
            if op.startswith("ds_read") or op in ("ds_bpermute_b32", "ds_permute_b32", "ds_swizzle_b32") or "_rtn" in op:
                self.wr = regs_of(ops[0])
                for o in ops[1:]:
                    self.rd |= regs_of(o)
            else:
                for o in ops:
                    self.rd |= regs_of(o)
            return
        if op.startswith("s_"):
            self.cls = "salu"
            if op.startswith("s_load") or op.startswith("s_buffer_load"):
                self.cls = "smem"
                self.wr = regs_of(ops[0])
                for o in ops[1:]:
                    self.rd |= regs_of(o)
            elif op.startswith("s_cmp") or op.startswith("s_cbranch") or op in ("s_branch", "s_barrier", "s_waitcnt", "s_endpgm", "s_setprio", "s_sleep"):
                for o in ops:
                    self.rd |= regs_of(o)
            else:
                if ops:
                    self.wr = regs_of(ops[0])
                for o in ops[1:]:
                    self.rd |= regs_of(o)
                if "saveexec" in op:
                    self.wr |= {("exec", 0)}
            return


def vec(regs):
    return {r for r in regs if r[0] in ("v", "a")}


def sca(regs):
    return {r for r in regs if r[0] in ("s", "vcc")}


def required_gap(p, c):
    need = 0
    pv = p.cls in ("valu", "trans", "readlane", "permlane")
    cv = c.cls in ("valu", "trans", "readlane", "permlane")
    if pv:
        w = vec(p.wr)
        if c.cls == "mfma" and (w & c.rd):
            need = max(need, 2)
        if cv and c.dpp and (w & vec(c.rd)):
            need = max(need, 2)
        if c.cls == "readlane" and (w & vec(c.rd)):
            need = max(need, 1)
        if c.cls == "permlane" and (w & vec(c.rd)):
            need = max(need, 2)
        if p.cls == "trans" and c.cls in ("valu", "readlane", "permlane", "mfma") and (w & vec(c.rd | c.wr)):
            need = max(need, 1)
        if p.cls == "trans" and c.cls in ("vmem", "ds") and (w & vec(c.rd)):
            need = max(need, 1)
        s = sca(p.wr)
        if s:
            if cv and (s & sca(c.rd)):
                need = max(need, 4 if c.cls == "readlane" or c.op.startswith("v_writelane") else 2)
            if c.cls == "vmem" and (s & sca(c.rd)):
                need = max(need, 5)
            if c.cls in ("salu", "smem") and (s & sca(c.rd)):
                need = max(need, 1)
        if ("exec", 0) in p.wr:
            need = max(need, 5)
    if p.cls == "mfma":
        tab_raw = {4: 8, 8: 12}[p.passes]
        d = p.wr
        if c.cls == "mfma":
            if d & c.ab:
                need = max(need, tab_raw)
            if d & c.srcc:
                if not (c.srcc == d and c.passes == p.passes):
                    need = max(need, {4: 6, 8: 10}[p.passes])
            if (d & c.wr) and not (c.srcc == d):
                need = max(need, tab_raw)
        elif cv or c.cls in ("vmem", "ds"):
            if d & (vec(c.rd) | vec(c.wr)):
                need = max(need, tab_raw)
        if cv and (p.srcc & vec(c.wr)):
            need = max(need, {4: 3, 8: 7}[p.passes])
        if c.cls in ("vmem", "ds") and (p.srcc & vec(c.wr)):
            need = max(need, {4: 3, 8: 7}[p.passes])
    if p.cls == "salu" and ("m0", 0) in p.wr and (c.lds_dma or c.op.startswith("s_movrel")):
        need = max(need, 1)
    if p.storedata:
        if cv and (p.storedata & vec(c.wr)):
            need = max(need, 2)
        elif (p.storedata & vec(c.wr)):
            need = max(need, 1)
    return need


class Asm:
    def __init__(self):
        self.lines = []
        self.window = []
        self.nops_inserted = 0

    def raw(self, text):
        self.lines.append(text)

    def comment(self, text):
        self.lines.append("    ; " + text)

    def label(self, name, flush=True):
        if flush:
            self.fence()
        self.lines.append(name + ":")

    def fence(self, n=None):
        worst = 0
        dist = 0
        for p in reversed(self.window):
            w = 0
            if p.cls == "mfma":
                w = {4: 8, 8: 12}[p.passes]
            elif p.cls in ("valu", "trans", "readlane", "permlane"):
                w = 5 if (sca(p.wr) or ("exec", 0) in p.wr) else 2
            elif p.storedata:
                w = 2
            elif p.cls == "salu" and ("m0", 0) in p.wr:
                w = 1
            worst = max(worst, w - dist)
            dist += p.nops
        if worst > 0:
            self._nop(worst)

    def _nop(self, n):
        while n > 0:
            k = min(n, 16)
            i = Inst("s_nop %d" % (k - 1))
            self.lines.append("    s_nop %d" % (k - 1))
            self.window.append(i)
            self.nops_inserted += k
            n -= k

    def __call__(self, text):
        for ln in text.strip().split("\n"):
            ln = ln.strip()
            if not ln:
                continue
            if ln.startswith(";"):
                self.lines.append("    " + ln)
                continue
            if ln.endswith(":"):
                self.label(ln[:-1])
                continue
            self._emit(ln)

    def _emit(self, ln):
        c = Inst(ln)
        if c.op == "s_branch" or c.op.startswith("s_cbranch"):
            self.fence()
        need = 0
        dist = 0
        for p in reversed(self.window):
            g = required_gap(p, c)
            if g > dist:
                need = max(need, g - dist)
            dist += p.nops
            if dist > 24:
                break
        if need > 0:
            self._nop(need)
        self.lines.append("    " + ln)
        self.window.append(c)
        if len(self.window) > 40:
            self.window = self.window[-30:]
        if c.op in ("s_branch", "s_endpgm") or c.op.startswith("s_cbranch"):
            pass

    def text(self):
        return "\n".join(self.lines) + "\n"


def vr(a, n=1):
    return "v%d" % a if n == 1 else "v[%d:%d]" % (a, a + n - 1)


def ar(a, n=1):
    return "a%d" % a if n == 1 else "a[%d:%d]" % (a, a + n - 1)


def sr(a, n=1):
    return "s%d" % a if n == 1 else "s[%d:%d]" % (a, a + n - 1)


import struct


def f32(x):
    return "0x%08x" % struct.unpack("<I", struct.pack("<f", x))[0]
```

```python
from gen import *

K2_WP, K2_CONV = 56, 448
K2_NWG = K2_WP + K2_CONV
HB = 0
S3B, S3P = 5184, 648
H2B, H2P = 10560, 320
S5B, S5P = 15280, 640
S7B, S7P = 20640, 520
S9B, S9P = 25760, 512
WB, WP = 30864, 8
Y0B = 34960
Y1B = Y0B + 8448
Y2B = Y1B + 7168
Y3B = Y2B + 6144
CONV_LDS = Y3B + 4096
K2_LDS = 72192
assert CONV_LDS <= K2_LDS


def k2_conv(A):
    A.label("k2_conv")
    A(f"s_sub_u32 s5, s2, {K2_WP}")
    srd(A, 48, P_WS, XNT_OFF, XT_SZ)
    srd(A, 52, P_WS, XT_OFF, XT_SZ)
    srd(A, 56, P_WS, TAPS_OFF, TAPS_SZ)
    srd(A, 60, P_WS, X2T_OFF, XT_SZ)
    A("s_lshl_b32 s6, s5, 2")
    A("s_load_dword s64, s[46:47], s6")
    A("s_add_u32 s7, s6, 1792")
    A("s_load_dword s65, s[46:47], s7")
    A("s_add_u32 s7, s6, 3584")
    A("s_load_dword s66, s[46:47], s7")
    A("s_lshl_b32 s7, s5, 1")
    A("s_and_b32 s7, s7, 0xfffffffc")
    A("s_load_dword s67, s[28:29], s7")
    A(f"s_mul_i32 s8, s5, {TAP_STRIDE}")
    A(f"s_add_u32 s7, s8, {TAPS_OFF + 2176}")
    A("s_load_dword s68, s[46:47], s7")
    A("v_and_b32 v3, 15, v1")
    A("v_lshrrev_b32 v4, 4, v1")
    A("v_lshlrev_b32 v5, 3, v4")
    A("v_sub_u32 v5, v5, v3")
    A("v_add_u32 v5, 15, v5")
    A("v_lshlrev_b32 v5, 1, v5")
    TF = 128
    A("s_cmp_eq_u32 s4, 2")
    A("s_cbranch_scc1 k2c_ld2")
    A("s_cmp_eq_u32 s4, 3")
    A("s_cbranch_scc1 k2c_ld3")
    for k in range(9):
        A(f"buffer_load_dwordx4 {vr(TF+4*k,4)}, v5, s[56:59], s8 offen offset:{64*k}")
    A("s_branch k2c_ldx")
    A.label("k2c_ld2")
    for q in range(2):
        for k in range(3):
            A(f"buffer_load_dwordx4 {vr(TF+4*(3*q+k),4)}, v5, s[56:59], s8 offen offset:{640 + 256*q + 64*k}")
    A("s_branch k2c_ldx")
    A.label("k2c_ld3")
    for q in range(4):
        for k in range(3):
            A(f"buffer_load_dwordx4 {vr(TF+4*(3*q+k),4)}, v5, s[56:59], s8 offen offset:{640 + 256*(q+2) + 64*k}")
    A.label("k2c_ldx")
    A("v_lshlrev_b32 v6, 4, v0")
    A("s_lshl_b32 s9, s5, 12")
    A("buffer_load_dwordx4 v[8:11], v6, s[48:51], s9 offen")
    A("buffer_load_dwordx4 v[240:243], v6, s[52:55], s9 offen")
    for j in range(4):
        A(f"v_mov_b32 v{12+j}, 0")
    A("v_cmp_gt_u32 vcc, 81, v0")
    A("s_and_saveexec_b64 s[10:11], vcc")
    A("s_cbranch_execz k2c_nozero")
    A("v_cmp_gt_u32 vcc, 51, v0")
    A("s_and_saveexec_b64 s[12:13], vcc")
    A("s_cbranch_execz k2c_z1")
    A(f"ds_write_b128 v6, v[12:15] offset:{HB}")
    A.label("k2c_z1")
    A("s_mov_b64 exec, s[12:13]")
    for (B, P) in ((S3B, S3P), (H2B, H2P), (S5B, S5P), (S7B, S7P), (S9B, S9P)):
        n = (2 * P - 16) // 16
        A(f"v_cmp_gt_u32 vcc, {n}, v0")
        A("s_and_saveexec_b64 s[12:13], vcc")
        A(f"s_cbranch_execz k2c_z_{B}")
        A(f"ds_write_b128 v6, v[12:15] offset:{B}")
        A.label(f"k2c_z_{B}")
        A("s_mov_b64 exec, s[12:13]")
    A.label("k2c_nozero")
    A("s_mov_b64 exec, -1")
    A("v_lshrrev_b32 v7, 4, v0")
    A("v_lshl_add_u32 v7, v7, 4, v6")
    A("v_add_u32 v16, 47, v0")
    A("v_lshrrev_b32 v16, 4, v16")
    A("v_lshl_add_u32 v16, v16, 4, v6")
    A("v_add_u32 v17, 46, v0")
    A("v_lshrrev_b32 v17, 4, v17")
    A("v_lshl_add_u32 v17, v17, 4, v6")
    A("s_waitcnt lgkmcnt(0)")
    A("v_mov_b32 v18, s65")
    A("v_add_f32 v18, 1.0, v18")
    round_bf16(A, 18, 18)
    A("v_mov_b32 v20, s64")
    A("s_and_b32 s7, s5, 1")
    A("s_lshl_b32 s7, s7, 4")
    A("s_lshr_b32 s67, s67, s7")
    A("s_lshl_b32 s67, s67, 16")
    A("s_waitcnt vmcnt(1)")
    HF = 232
    for j in range(4):
        unpack2(A, HF+2*j, HF+2*j+1, 8+j)
    for j in range(4):
        A(f"v_pk_mul_f32 {vr(HF+2*j,2)}, {vr(HF+2*j,2)}, v[18:19] op_sel_hi:[1,0]")
    for j in range(4):
        A(f"v_cvt_pk_bf16_f32 v{8+j}, v{HF+2*j}, v{HF+2*j+1}")
    for j in range(4):
        unpack2(A, HF+2*j, HF+2*j+1, 8+j)
    for j in range(4):
        A(f"v_pk_add_f32 {vr(HF+2*j,2)}, {vr(HF+2*j,2)}, v[20:21] op_sel_hi:[1,0]")
    for j in range(4):
        A(f"v_cvt_pk_bf16_f32 v{8+j}, v{HF+2*j}, v{HF+2*j+1}")
    A(f"ds_write_b128 v7, v[8:11] offset:{HB + 816}")
    for j in range(4):
        unpack2(A, HF+2*j, HF+2*j+1, 8+j)
    A("s_waitcnt lgkmcnt(0)")
    A("s_barrier")
    A(f"ds_read_b64 v[8:9], v17 offset:{HB + 744}")
    A(f"ds_read_b128 v[10:13], v16 offset:{HB + 752}")
    A(f"ds_read_b64 v[14:15], v7 offset:{HB + 816}")
    E = 24
    Q = 40
    S4 = 54
    S3 = 66
    S5 = 76
    S7 = 86
    S9 = 96
    A("s_waitcnt lgkmcnt(0)")
    for j in range(8):
        unpack2(A, E+2*j, E+2*j+1, 8+j)
    A("v_pk_mov_b32 v[104:105], v[8:9], v[10:11] op_sel:[1,0]")
    A("v_pk_mov_b32 v[106:107], v[10:11], v[12:13] op_sel:[1,0]")
    A(f"ds_write_b128 v6, v[104:107] offset:{H2B + 2*H2P - 16}")
    for k in range(14):
        A(f"v_add_f32 v{Q+k}, v{E+k}, v{E+k+1}")
    for m in range(10):
        A(f"v_add_f32 v{S3+m}, v{Q+m+3}, v{E+m+5}")
    for k in range(0, 12, 2):
        A(f"v_pk_add_f32 {vr(S4+k,2)}, {vr(Q+k,2)}, {vr(Q+k+2,2)}")
    for m in range(0, 10, 2):
        A(f"v_pk_add_f32 {vr(S5+m,2)}, {vr(S4+m+2,2)}, {vr(E+m+6,2)}")
    for m in range(-1, 8):
        A(f"v_add_f32 v{S7+m+1}, v{S4+m+1}, v{S3+m+2}")
    for m in range(0, 8, 2):
        A(f"v_pk_add_f32 {vr(S9+m,2)}, {vr(S4+m,2)}, {vr(S5+m+2,2)}")
    outs = ((S3, S3B, S3P, 104), (S5, S5B, S5P, 108), (S7+1, S7B, S7P, 112), (S9, S9B, S9P, 116), (S7, WB, WP, 120))
    for (src, B, P, t) in outs:
        for j in range(4):
            A(f"v_cvt_pk_bf16_f32 v{t+j}, v{src+2*j}, v{src+2*j+1}")
        A(f"ds_write_b128 v6, {vr(t,4)} offset:{B + 2*P - 16}")
    A("v_bfe_u32 v8, v1, 2, 2")
    A("v_and_b32 v9, 3, v1")
    A("v_lshl_add_u32 v10, v4, 3, v8")
    A("s_waitcnt vmcnt(0) lgkmcnt(0)")
    A("s_barrier")
    ACC = 192
    DF = 96
    A("s_cmp_eq_u32 s4, 2")
    A("s_cbranch_scc1 k2c_seg1")
    A("s_cmp_eq_u32 s4, 3")
    A("s_cbranch_scc1 k2c_seg23")
    A("s_lshl_b32 s7, s4, 4")
    A("v_lshlrev_b32 v11, 3, v4")
    A("v_add_u32 v11, s7, v11")
    A("v_mul_u32_u24 v12, 272, v3")
    A("v_lshl_add_u32 v12, v11, 1, v12")
    A("v_cmp_le_u32 vcc, 16, v11")
    A("v_add_u32 v13, 16, v12")
    A("v_cndmask_b32 v13, v12, v13, vcc")
    NS = 12

    def rd0(s):
        z = 32*s + 112
        A(f"ds_read_b128 {vr(DF+4*(s%8),4)}, v{13 if s % 4 == 0 else 12} offset:{HB + 2*z + 16*(z >> 7)}")
    PF = 4
    for s in range(PF):
        rd0(s)
    first = [True] * 4
    for s in range(NS):
        if s + PF < NS:
            rd0(s + PF)
            A(f"s_waitcnt lgkmcnt({PF})")
        else:
            A(f"s_waitcnt lgkmcnt({NS - 1 - s})")
        for a in range(4):
            k = s - a
            if 0 <= k <= 8:
                c = "0" if first[a] else vr(ACC+4*a, 4)
                first[a] = False
                A(f"v_mfma_f32_16x16x32_bf16 {vr(ACC+4*a,4)}, {vr(TF+4*k,4)}, {vr(DF+4*(s%8),4)}, {c}")
    A("v_mul_u32_u24 v12, 528, v3")
    A("v_lshl_add_u32 v12, v4, 4, v12")
    A("s_lshl_b32 s7, s4, 6")
    A("v_add_u32 v12, s7, v12")
    for a in range(4):
        A(f"ds_write_b128 v12, {vr(ACC+4*a,4)} offset:{Y0B + 128*a}")
    A("s_branch k2c_epi")

    def seg_tr(ntile, phis, seqs, vbase, ustride, accbase, tfbase):
        items = [(phi, q) for phi in phis for q in range(len(seqs))]
        first = [True] * ntile

        def rd(n):
            phi, q = items[n]
            for hf in range(2):
                imm = ustride * (16*phi + 4*hf - 80) + seqs[q]
                assert 0 <= imm < 65536
                A(f"ds_read_b64_tr_b16 {vr(DF+4*(n%8)+2*hf,2)}, v{vbase} offset:{imm}")
        PFN = 4
        for n in range(min(PFN, len(items))):
            rd(n)
        for n in range(len(items)):
            if n + PFN < len(items):
                rd(n + PFN)
                A(f"s_waitcnt lgkmcnt({2*PFN})")
            else:
                A(f"s_waitcnt lgkmcnt({2*(len(items)-1-n)})")
            phi, q = items[n]
            for k in range(3):
                tau = phi - 2*k
                if 0 <= tau < ntile:
                    c = "0" if first[tau] else vr(accbase+4*tau, 4)
                    first[tau] = False
                    A(f"v_mfma_f32_16x16x32_bf16 {vr(accbase+4*tau,4)}, {vr(DF+4*(n%8),4)}, {vr(tfbase+4*(3*q+k),4)}, {c}")
        assert not any(first)

    A.label("k2c_seg1")
    A("v_mul_u32_u24 v12, 112, v9")
    A("v_add_u32 v12, v12, v10")
    A("v_lshlrev_b32 v12, 3, v12")
    seg_tr(7, range(11), [S3B + 2*S3P, H2B + 2*H2P], 12, 8, ACC, TF)
    A("v_mul_u32_u24 v12, 112, v4")
    A("v_add_u32 v12, v12, v3")
    A("v_lshlrev_b32 v12, 4, v12")
    for t in range(7):
        A(f"ds_write_b128 v12, {vr(ACC+4*t,4)} offset:{Y1B + 256*t}")
    A("s_branch k2c_epi")
    A.label("k2c_seg23")
    A("v_lshrrev_b32 v12, 1, v9")
    A("v_mul_u32_u24 v12, 96, v12")
    A("v_add_u32 v12, v12, v10")
    A("v_lshlrev_b32 v12, 4, v12")
    A("v_and_b32 v13, 1, v9")
    A("v_lshl_add_u32 v12, v13, 3, v12")
    A("v_lshlrev_b32 v13, 5, v10")
    A("v_lshl_add_u32 v13, v9, 3, v13")
    seg_tr(6, range(10), [S5B + 2*S5P, S3B + 2*S3P - 8], 12, 16, ACC, TF)
    seg_tr(4, range(3, 8), [S9B + 2*S9P, S7B + 2*S7P - 16], 13, 32, ACC + 24, TF + 24)
    A("v_lshrrev_b32 v12, 1, v4")
    A("v_mul_u32_u24 v12, 96, v12")
    A("v_add_u32 v12, v12, v3")
    A("v_lshlrev_b32 v12, 5, v12")
    A("v_and_b32 v13, 1, v4")
    A("v_lshl_add_u32 v12, v13, 4, v12")
    for t in range(6):
        A(f"ds_write_b128 v12, {vr(ACC+4*t,4)} offset:{Y2B + 512*t}")
    A("v_lshlrev_b32 v13, 6, v3")
    A("v_lshl_add_u32 v13, v4, 4, v13")
    for t in range(4):
        A(f"ds_write_b128 v13, {vr(ACC+24+4*t,4)} offset:{Y3B + 1024*t}")
    A.label("k2c_epi")
    A("v_lshlrev_b32 v12, 5, v0")
    A("v_lshrrev_b32 v13, 4, v0")
    A("v_lshl_add_u32 v13, v13, 4, v12")
    A(f"v_add_u32 v13, {Y0B}, v13")
    A(f"v_add_u32 v14, {Y1B - 1024}, v12")
    A("v_cmp_le_u32 vcc, 32, v0")
    A("v_cndmask_b32 v14, 0, v14, vcc")
    A(f"v_add_u32 v15, {Y2B - 2048}, v12")
    A("v_cmp_le_u32 vcc, 64, v0")
    A("v_cndmask_b32 v15, 0, v15, vcc")
    A(f"v_add_u32 v16, {Y3B - 4096}, v12")
    A("v_cmp_le_u32 vcc, 128, v0")
    A("v_cndmask_b32 v16, 0, v16, vcc")
    A(f"v_add_u32 v17, {WB + 2*WP - 2048}, v6")
    A("v_cmp_le_u32 vcc, 127, v0")
    A("v_cndmask_b32 v17, 0, v17, vcc")
    A("s_waitcnt lgkmcnt(0)")
    A("s_barrier")
    for n, a in enumerate((13, 14, 15, 16)):
        A(f"ds_read_b128 {vr(24+8*n,4)}, v{a}")
        A(f"ds_read_b128 {vr(28+8*n,4)}, v{a} offset:16")
    A("ds_read_b128 v[56:59], v17")
    A("v_mov_b32 v18, s68")
    A("v_mov_b32 v20, s67")
    A("v_mov_b32 v22, s66")
    for j in range(4):
        A(f"v_pk_mul_f32 {vr(72+2*j,2)}, {vr(HF+2*j,2)}, v[20:21] op_sel_hi:[1,0]")
    for j in range(4):
        A(f"v_cvt_pk_bf16_f32 v{80+j}, v{72+2*j}, v{73+2*j}")
    for j in range(4):
        unpack2(A, 72+2*j, 73+2*j, 80+j)
    for j in range(4):
        unpack2(A, 84+2*j, 85+2*j, 240+j)
    A("s_waitcnt lgkmcnt(5)")
    for j in range(4):
        A(f"v_pk_add_f32 {vr(24+2*j,2)}, {vr(24+2*j,2)}, {vr(32+2*j,2)}")
    A("s_waitcnt lgkmcnt(1)")
    for j in range(4):
        A(f"v_pk_add_f32 {vr(40+2*j,2)}, {vr(40+2*j,2)}, {vr(48+2*j,2)}")
    A("s_waitcnt lgkmcnt(0)")
    for j in range(4):
        unpack2(A, 60+2*j, 61+2*j, 56+j)
    for j in range(4):
        A(f"v_pk_add_f32 {vr(24+2*j,2)}, {vr(24+2*j,2)}, {vr(40+2*j,2)}")
    for j in range(4):
        A(f"v_pk_fma_f32 {vr(24+2*j,2)}, {vr(60+2*j,2)}, v[18:19], {vr(24+2*j,2)} op_sel_hi:[1,0,1]")

    def rnd(base):
        for j in range(4):
            A(f"v_cvt_pk_bf16_f32 v{80+j}, v{base+2*j}, v{base+2*j+1}")
        for j in range(4):
            unpack2(A, base+2*j, base+2*j+1, 80+j)
    rnd(24)
    for j in range(4):
        A(f"v_pk_add_f32 {vr(24+2*j,2)}, {vr(24+2*j,2)}, {vr(72+2*j,2)}")
    rnd(24)
    for j in range(4):
        A(f"v_pk_mul_f32 {vr(24+2*j,2)}, {vr(24+2*j,2)}, v[22:23] op_sel_hi:[1,0]")
    rnd(24)
    for j in range(4):
        A(f"v_pk_add_f32 {vr(24+2*j,2)}, {vr(24+2*j,2)}, {vr(84+2*j,2)}")
    for j in range(4):
        A(f"v_cvt_pk_bf16_f32 v{80+j}, v{24+2*j}, v{25+2*j}")
    A("buffer_store_dwordx4 v[80:83], v6, s[60:63], s9 offen")
    A("s_endpgm")


def k2_wprep(A):
    RS = 160
    BACC = 448 * RS
    A.label("k2_wprep")
    A("s_and_b32 s5, s2, 1")
    A("s_lshr_b32 s6, s2, 1")
    A("s_cmp_eq_u32 s5, 0")
    A("s_cselect_b32 s48, s32, s34")
    A("s_cselect_b32 s49, s33, s35")
    A(f"s_mov_b32 s50, {D*F*2}")
    A("s_mov_b32 s51, 0x20000")
    srd(A, 52, P_WS, MOD_OFF, MOD_SZ)
    srd(A, 56, P_WS, W1F_OFF, W1F_SZ)
    srd(A, 60, P_WS, SB_OFF, SB_SZ)
    A("v_lshrrev_b32 v3, 3, v0")
    A("v_and_b32 v4, 7, v0")
    A(f"s_mov_b32 s7, {14*3584}")
    A("v_mul_lo_u32 v5, v3, s7")
    A("v_lshl_add_u32 v5, v4, 4, v5")
    A("v_mul_u32_u24 v6, 56, v3")
    for j in range(4):
        A(f"buffer_load_dwordx4 {vr(8+4*j,4)}, v6, s[52:55], 0 offen offset:{1344*4 - 4096 + 16*j}" if False else
          f"buffer_load_dwordx4 {vr(8+4*j,4)}, v6, s[52:55], s70 offen offset:{16*j}" if False else "s_nop 0")
    A("s_mov_b32 s70, 5376")
    A("s_mov_b32 s71, 7168")
    for j in range(4):
        A(f"buffer_load_dwordx4 {vr(8+4*j,4)}, v6, s[52:55], s70 offen offset:{16*j}")
    for j in range(4):
        A(f"buffer_load_dwordx4 {vr(24+4*j,4)}, v6, s[52:55], s71 offen offset:{16*j}")
    A("s_lshl_b32 s8, s6, 7")
    W = 40
    for s in range(14):
        A(f"buffer_load_dwordx4 {vr(W+4*s,4)}, v5, s[48:51], s8 offen")
        if s < 13:
            A("s_add_u32 s8, s8, 3584")
    A("v_mov_b32 v7, 0")
    A("v_lshlrev_b32 v100, 2, v1")
    A(f"ds_write_b32 v100, v7 offset:{BACC - 65536 if BACC >= 65536 else BACC}" if False else "s_nop 0")
    A(f"v_add_u32 v101, {BACC}, v100")
    A("ds_write_b32 v101, v7")
    A(f"v_mul_u32_u24 v102, {14*RS}, v3")
    A("v_lshl_add_u32 v102, v4, 4, v102")
    A("s_waitcnt vmcnt(14)")
    for s in range(14):
        A(f"v_add_f32 v{128+2*s}, 1.0, v{24+s}")
    for s in range(14):
        round_bf16(A, 128+2*s, 128+2*s)
    for s in range(14):
        A(f"v_mov_b32 v{160+2*s}, v{8+s}")
    ACC = 104
    T = 112
    T2 = 120
    for s in range(14):
        A(f"s_waitcnt vmcnt({13-s})")
        for j in range(4):
            unpack2(A, T+2*j, T+2*j+1, W+4*s+j)
        for j in range(4):
            A(f"v_pk_mul_f32 {vr(T2+2*j,2)}, {vr(T+2*j,2)}, {vr(128+2*s,2)} op_sel_hi:[1,0]")
        for j in range(4):
            if s == 0:
                A(f"v_pk_mul_f32 {vr(ACC+2*j,2)}, {vr(T+2*j,2)}, {vr(160+2*s,2)} op_sel_hi:[1,0]")
            else:
                A(f"v_pk_fma_f32 {vr(ACC+2*j,2)}, {vr(T+2*j,2)}, {vr(160+2*s,2)}, {vr(ACC+2*j,2)} op_sel_hi:[1,0,1]")
        for j in range(4):
            A(f"v_cvt_pk_bf16_f32 v{W+4*s+j}, v{T2+2*j}, v{T2+2*j+1}")
        A(f"ds_write_b128 v102, {vr(W+4*s,4)} offset:{s*RS}")
    A("s_waitcnt lgkmcnt(0)")
    A("s_barrier")
    A("v_lshlrev_b32 v103, 5, v4")
    A(f"v_add_u32 v103, {BACC}, v103")
    for j in range(8):
        A(f"ds_add_f32 v103, v{ACC+j} offset:{4*j}")
    A("v_lshrrev_b32 v8, 2, v1")
    A(f"v_mul_u32_u24 v8, {RS}, v8")
    A("v_and_b32 v9, 3, v1")
    A("v_lshl_add_u32 v8, v9, 3, v8")
    A("s_lshl_b32 s9, s4, 5")
    A("v_add_u32 v8, s9, v8")
    A(f"v_add_u32 v9, {8*32*RS}, v8")
    for j in range(4):
        A(f"v_mov_b32 v{12+j}, 0x3f803f80")
    FR = 16
    for k in range(14):
        for hf in range(2):
            kk = k if k < 8 else k - 8
            A(f"ds_read_b64_tr_b16 {vr(FR+4*k+2*hf,2)}, v{8 if k < 8 else 9} offset:{(32*kk + 16*hf)*RS}")
    A("s_lshl_b32 s10, s6, 2")
    A("s_add_u32 s10, s10, s4")
    A("s_mul_i32 s11, s10, 28")
    A("s_add_u32 s11, s11, s5")
    A("s_lshl_b32 s11, s11, 10")
    A("v_lshlrev_b32 v10, 4, v1")
    for k in range(14):
        A(f"s_waitcnt lgkmcnt({min(15, 2*(13-k))})")
        A(f"buffer_store_dwordx4 {vr(FR+4*k,4)}, v10, s[56:59], s11 offen")
        c = "0" if k == 0 else "v[72:75]"
        A(f"v_mfma_f32_16x16x32_bf16 v[72:75], {vr(FR+4*k,4)}, v[12:15], {c}")
        if k < 13:
            A("s_add_u32 s11, s11, 2048")
    A(f"s_mul_i32 s12, s5, {2*F*4}")
    A("s_lshl_b32 s13, s10, 6")
    A("s_add_u32 s12, s12, s13")
    A("v_and_b32 v11, 15, v1")
    A("v_cmp_eq_u32 vcc, 0, v11")
    A("s_and_saveexec_b64 s[14:15], vcc")
    A("buffer_store_dwordx4 v[72:75], v1, s[60:63], s12 offen")
    A("s_mov_b64 exec, s[14:15]")
    A("s_waitcnt lgkmcnt(0)")
    A("s_barrier")
    A("s_cmp_lg_u32 s4, 0")
    A("s_cbranch_scc1 k2_kernel_exit")
    A("ds_read_b32 v8, v101")
    A(f"s_mul_i32 s12, s5, {2*F*4}")
    A("s_lshl_b32 s13, s6, 8")
    A("s_add_u32 s12, s12, s13")
    A(f"s_add_u32 s12, s12, {F*4}")
    A("s_waitcnt lgkmcnt(0)")
    A("buffer_store_dword v8, v100, s[60:63], s12 offen")
    A("s_endpgm")


def gen_k2(A):
    prologue(A, "k2_kernel", K2_NWG)
    A(f"s_cmp_lt_u32 s2, {K2_WP}")
    A("s_cbranch_scc1 k2_wprep")
    k2_conv(A)
    k2_wprep(A)
    A.label("k2_kernel_exit")
    A("s_endpgm")


KERNELS = [("k1_kernel", gen_k1, K1_NWG, 256, K1_LDS, 180, 0),
           ("k2_kernel", gen_k2, K2_NWG, 256, K2_LDS, 256, 0)]
try:
    import gen3
    KERNELS += gen3.KERNELS
except ImportError:
    pass
```

```python
from gen import *

K3_NWG = 256
STATS = 448 * 256
K3_LDS = STATS + 1024


def gen_k3(A):
    prologue(A, "k3_kernel", K3_NWG)
    A("s_and_b32 s5, s2, 7")
    A("s_lshr_b32 s6, s2, 3")
    A("s_and_b32 s7, s5, 1")
    A("s_lshl_b32 s7, s7, 3")
    A("s_and_b32 s8, s6, 7")
    A("s_add_u32 s7, s7, s8")
    A("s_lshr_b32 s8, s5, 1")
    A("s_lshl_b32 s8, s8, 2")
    A("s_lshr_b32 s9, s6, 3")
    A("s_add_u32 s8, s8, s9")
    srd(A, 48, P_WS, X2T_OFF, XT_SZ)
    srd(A, 52, P_WS, W1F_OFF, W1F_SZ)
    srd(A, 56, P_WS, SB_OFF, SB_SZ)
    srd(A, 60, P_WS, HHF_OFF, HHF_SZ)
    srd(A, 64, P_WS, X2N_OFF, XT_SZ)
    A("v_lshrrev_b32 v3, 4, v1")
    A("v_and_b32 v4, 15, v1")
    A("v_lshlrev_b32 v5, 1, v3")
    A("v_xor_b32 v6, v4, v5")
    A("v_lshlrev_b32 v6, 4, v6")
    A("v_lshl_add_u32 v6, v3, 12, v6")
    A("v_xor_b32 v7, 0x80, v6")
    A("s_mul_i32 s10, s4, 14")
    A("s_lshl_b32 s11, s10, 14")
    A("s_lshl_b32 s12, s7, 8")
    A("s_add_u32 s11, s11, s12")
    A("s_lshl_b32 s12, s10, 10")
    for i in range(14):
        A("s_mov_b32 m0, s12")
        A(f"buffer_load_dwordx4 v{6 + i % 2}, s[48:51], s11 offen lds")
        if i < 13:
            A("s_add_u32 s11, s11, 16384")
            A("s_add_u32 s12, s12, 1024")
    AD, AD2, BR, CO, WF, ACC = 8, 16, 24, 40, 56, 168
    A("v_lshrrev_b32 v5, 2, v1")
    A("v_and_b32 v2, 7, v5")
    A("v_lshlrev_b32 v5, 8, v5")
    A("v_and_b32 v40, 3, v1")
    A("v_lshl_add_u32 v5, v40, 3, v5")
    for t in range(8):
        A(f"v_xor_b32 v{AD+t}, {t}, v2")
        A(f"v_lshl_add_u32 v{AD+t}, v{AD+t}, 5, v5")
        A(f"v_add_u32 v{AD2+t}, 0x10000, v{AD+t}")
    A("v_lshlrev_b32 v2, 4, v1")
    A("s_cmp_eq_u32 s4, 7")
    A("s_cbranch_scc1 k3_stats")
    A("s_mul_i32 s13, s8, 7")
    A("s_add_u32 s13, s13, s4")
    A("s_mul_i32 s14, s13, 28672")
    for n in range(28):
        A(f"buffer_load_dwordx4 {vr(WF+4*n,4)}, v2, s[52:55], s14 offen offset:{(n%4)*1024}")
        if n % 4 == 3 and n < 27:
            A("s_add_u32 s14, s14, 4096")
    A("v_lshlrev_b32 v5, 4, v3")
    A("s_lshl_b32 s14, s13, 6")
    for a in range(4):
        A(f"buffer_load_dwordx4 {vr(CO+4*a,4)}, v5, s[56:59], s14 offen")
        if a < 3:
            A("s_add_u32 s14, s14, 7168")
    A("s_waitcnt vmcnt(32)")
    A("s_barrier")

    steps = [(k, t) for k in range(14) for t in range(8)]
    PF = 3

    def rdB(n):
        k, t = steps[n]
        for hf in range(2):
            a = (AD if k < 8 else AD2) + t
            A(f"ds_read_b64_tr_b16 {vr(BR+4*(n%4)+2*hf,2)}, v{a} offset:{(k%8)*8192 + hf*4096}")

    def mainloop(body, need_w):
        for n in range(PF):
            rdB(n)
        for n, (k, t) in enumerate(steps):
            if n + PF < len(steps):
                rdB(n + PF)
                lg = 2 * PF
            else:
                lg = 2 * (len(steps) - 1 - n)
            if t == 0 and need_w:
                A(f"s_waitcnt vmcnt({4 + 2*(13-k)}) lgkmcnt({lg})")
            else:
                A(f"s_waitcnt lgkmcnt({lg})")
            body(n, k, t)

    def gemm_body(n, k, t):
        for m in range(2):
            acc = ACC + 32*m + 4*t
            c = "0" if k == 0 else vr(acc, 4)
            A(f"v_mfma_f32_16x16x32_bf16 {vr(acc,4)}, {vr(WF+4*(2*k+m),4)}, {vr(BR+4*(n%4),4)}, {c}")
    mainloop(gemm_body, True)
    A("s_waitcnt vmcnt(0)")
    A("s_barrier")
    ST = 56
    A("v_lshlrev_b32 v5, 3, v4")
    A(f"v_add_u32 v5, {STATS}, v5")
    for t in range(8):
        A(f"ds_read_b64 {vr(ST+2*t,2)}, v5 offset:{128*t}")
    A("s_mul_i32 s14, s7, 448")
    A("s_lshr_b32 s15, s13, 1")
    A("s_add_u32 s14, s14, s15")
    A("s_lshl_b32 s14, s14, 10")
    A("s_and_b32 s15, s13, 1")
    A("s_lshl_b32 s15, s15, 3")
    A("s_add_u32 s14, s14, s15")
    A(f"v_mov_b32 v72, {f32(-LOG2E)}")
    A("v_mov_b32 v74, 1.0")
    SG, BG, SU, BU = CO, CO+4, CO+8, CO+12
    for t in range(8):
        A(f"s_waitcnt lgkmcnt({7-t})")
        st = vr(ST+2*t, 2)
        T = 80 + 16*(t % 2)
        G, U = ACC + 4*t, ACC + 32 + 4*t
        for p in range(2):
            A(f"v_pk_fma_f32 {vr(T+2*p,2)}, {vr(SG+2*p,2)}, {st}, {vr(BG+2*p,2)} op_sel:[0,1,0] op_sel_hi:[1,1,1] neg_lo:[0,1,0] neg_hi:[0,1,0]")
            A(f"v_pk_fma_f32 {vr(T+4+2*p,2)}, {vr(SU+2*p,2)}, {st}, {vr(BU+2*p,2)} op_sel:[0,1,0] op_sel_hi:[1,1,1] neg_lo:[0,1,0] neg_hi:[0,1,0]")
        for p in range(2):
            A(f"v_pk_fma_f32 {vr(T+2*p,2)}, {vr(G+2*p,2)}, {st}, {vr(T+2*p,2)} op_sel_hi:[1,0,1]")
            A(f"v_pk_fma_f32 {vr(T+4+2*p,2)}, {vr(U+2*p,2)}, {st}, {vr(T+4+2*p,2)} op_sel_hi:[1,0,1]")
        for p in range(2):
            A(f"v_pk_mul_f32 {vr(T+8+2*p,2)}, {vr(T+2*p,2)}, v[72:73] op_sel_hi:[1,0]")
        for j in range(4):
            A(f"v_exp_f32 v{T+8+j}, v{T+8+j}")
        for p in range(2):
            A(f"v_pk_mul_f32 {vr(T+2*p,2)}, {vr(T+2*p,2)}, {vr(T+4+2*p,2)}")
        for p in range(2):
            A(f"v_pk_add_f32 {vr(T+8+2*p,2)}, {vr(T+8+2*p,2)}, v[74:75] op_sel_hi:[1,0]")
        for j in range(4):
            A(f"v_rcp_f32 v{T+8+j}, v{T+8+j}")
        for p in range(2):
            A(f"v_pk_mul_f32 {vr(T+2*p,2)}, {vr(T+2*p,2)}, {vr(T+8+2*p,2)}")
        for p in range(2):
            A(f"v_cvt_pk_bf16_f32 v{T+12+p}, v{T+2*p}, v{T+2*p+1}")
        A(f"buffer_store_dwordx2 {vr(T+12,2)}, v2, s[60:63], s14 offen")
        if t < 7:
            A(f"s_add_u32 s14, s14, {56*1024}")
    A("s_endpgm")

    A.label("k3_stats")
    for j in range(4):
        A(f"v_mov_b32 v{CO+j}, 0x3f803f80")
    A("s_waitcnt vmcnt(0)")
    A("s_barrier")

    def stat_body(n, k, t):
        b = vr(BR+4*(n % 4), 4)
        acc = ACC + 4*t
        c = "0" if k == 0 else vr(acc, 4)
        A(f"v_mfma_f32_16x16x32_bf16 {vr(acc,4)}, {b}, {b}, {c}")
        acc = ACC + 32 + 4*t
        c = "0" if k == 0 else vr(acc, 4)
        A(f"v_mfma_f32_16x16x32_bf16 {vr(acc,4)}, {vr(CO,4)}, {b}, {c}")
    mainloop(stat_body, False)
    A("v_and_b32 v5, 3, v4")
    A("v_cmp_eq_u32 s[70:71], 1, v5")
    A("v_cmp_eq_u32 s[72:73], 2, v5")
    A("v_cmp_eq_u32 s[74:75], 3, v5")
    A("v_lshrrev_b32 v5, 2, v4")
    A("v_cmp_eq_u32 s[76:77], v5, v3")
    A(f"v_mov_b32 v44, {f32(1.0/448)}")
    Qr, Mr = 56, 64
    for t in range(8):
        g = ACC + 4*t
        A(f"v_cndmask_b32 v{Qr+t}, v{g}, v{g+1}, s[70:71]")
        A(f"v_cndmask_b32 v{Qr+t}, v{Qr+t}, v{g+2}, s[72:73]")
        A(f"v_cndmask_b32 v{Qr+t}, v{Qr+t}, v{g+3}, s[74:75]")
        A(f"v_mul_f32 v{Mr+t}, v{ACC+32+4*t}, v44")
    for t in range(8):
        A(f"v_mul_f32 v{Qr+t}, v{Qr+t}, v44")
    for t in range(8):
        A(f"v_fma_f32 v{Qr+t}, -v{Mr+t}, v{Mr+t}, v{Qr+t}")
    for t in range(8):
        A(f"v_max_f32 v{Qr+t}, 0, v{Qr+t}")
    for t in range(8):
        round_bf16(A, Qr+t, Qr+t)
        round_bf16(A, Mr+t, Mr+t)
    for t in range(8):
        A(f"v_add_f32 v{Qr+t}, {f32(1e-5)}, v{Qr+t}")
    for t in range(8):
        round_bf16(A, Qr+t, Qr+t)
    for t in range(8):
        A(f"v_sqrt_f32 v{Qr+t}, v{Qr+t}")
    for t in range(8):
        round_bf16(A, Qr+t, Qr+t)
    for t in range(8):
        A(f"v_rcp_f32 v{72+2*t}, v{Qr+t}")
    for t in range(8):
        A(f"v_mul_f32 v{73+2*t}, v{72+2*t}, v{Mr+t}")
    A("v_lshlrev_b32 v5, 3, v4")
    A(f"v_add_u32 v5, {STATS}, v5")
    A("s_mov_b64 exec, s[76:77]")
    for t in range(8):
        A(f"ds_write_b64 v5, {vr(72+2*t,2)} offset:{128*t}")
    A("s_mov_b64 exec, -1")
    A("s_waitcnt lgkmcnt(0)")
    A("s_barrier")
    A("s_cmp_ge_u32 s8, 14")
    A("s_cbranch_scc1 k3_kernel_exit")
    A("s_lshl_b32 s14, s8, 13")
    for t in range(8):
        A(f"v_add_u32 v{AD+t}, s14, v{AD+t}")
    for t in range(8):
        for hf in range(2):
            A(f"ds_read_b64_tr_b16 {vr(88+4*t+2*hf,2)}, v{AD+t} offset:{hf*4096}")
    A("v_mul_u32_u24 v5, 896, v4")
    A("v_lshl_add_u32 v5, v3, 3, v5")
    A(f"s_mul_i32 s14, s7, {128*896}")
    A("s_lshl_b32 s15, s8, 6")
    A("s_add_u32 s14, s14, s15")
    for t in range(8):
        A(f"s_waitcnt lgkmcnt({2*(7-t)})")
        A(f"buffer_store_dwordx2 {vr(88+4*t,2)}, v5, s[64:67], s14 offen")
        A(f"buffer_store_dwordx2 {vr(90+4*t,2)}, v5, s[64:67], s14 offen offset:32")
        if t < 7:
            A(f"s_add_u32 s14, s14, {16*896}")
    A.label("k3_kernel_exit")
    A("s_endpgm")


K4_NWG = 224
K4_LDS = 65536


def gen_k4(A):
    prologue(A, "k4_kernel", K4_NWG)
    A("s_and_b32 s5, s2, 7")
    A("s_lshr_b32 s6, s2, 3")
    A("s_mul_i32 s7, s6, 37")
    A("s_lshr_b32 s7, s7, 8")
    A("s_mul_i32 s8, s7, 7")
    A("s_sub_u32 s8, s6, s8")
    A("s_lshl_b32 s5, s5, 2")
    A("s_add_u32 s7, s7, s5")
    srd(A, 48, P_WS, W2F_OFF, W2F_SZ)
    srd(A, 52, P_WS, HHF_OFF, HHF_SZ)
    srd(A, 56, P_WS, MOD_OFF, MOD_SZ)
    srd(A, 60, P_WS, X2N_OFF, XT_SZ)
    srd(A, 64, P_OUT, 0, XT_SZ)
    A("v_lshrrev_b32 v3, 4, v1")
    A("v_and_b32 v4, 15, v1")
    A("v_lshlrev_b32 v2, 4, v1")
    A("v_lshlrev_b32 v5, 6, v3")
    A("s_lshl_b32 s9, s8, 8")
    A(f"s_add_u32 s9, s9, {2240*4}")
    for j in range(4):
        A(f"buffer_load_dwordx4 {ar(64+4*j,4)}, v5, s[56:59], s9 offen offset:{16*j}")
    A("v_mul_u32_u24 v6, 896, v4")
    A("v_lshl_add_u32 v6, v3, 5, v6")
    A("s_lshl_b32 s10, s7, 2")
    A("s_add_u32 s10, s10, s4")
    A(f"s_mul_i32 s10, s10, {16*896}")
    A("s_lshl_b32 s11, s8, 7")
    A("s_add_u32 s10, s10, s11")
    for j in range(2):
        A(f"buffer_load_dwordx4 {ar(80+4*j,4)}, v6, s[60:63], s10 offen offset:{16*j}")
    A("s_mul_i32 s12, s8, 56")
    A("s_mul_i32 s13, s4, 14")
    A("s_add_u32 s12, s12, s13")
    A("s_lshl_b32 s12, s12, 12")
    A("s_mul_i32 s14, s7, 224")
    A("s_add_u32 s14, s14, s13")
    A("s_lshl_b32 s14, s14, 10")
    for tt in range(4):
        A(f"s_add_u32 s{70+tt}, s14, {tt*57344}")
    P = 7
    FB = 24

    def ld(k):
        b = FB + 32*(k % P)
        for jt in range(4):
            A(f"buffer_load_dwordx4 {vr(b+4*jt,4)}, v2, s[48:51], s12 offen offset:{1024*jt}")
        for tt in range(4):
            A(f"buffer_load_dwordx4 {vr(b+16+4*tt,4)}, v2, s[52:55], s{70+tt} offen offset:{1024*(k%4)}")
        A("s_add_u32 s12, s12, 4096")
        if k % 4 == 3:
            for tt in range(4):
                A(f"s_add_u32 s{70+tt}, s{70+tt}, 4096")
    for k in range(P):
        ld(k)
    for k in range(14):
        issued = min(14, k + P)
        A(f"s_waitcnt vmcnt({8*(issued - k - 1)})")
        b = FB + 32*(k % P)
        for tt in range(4):
            for jt in range(4):
                acc = 16*tt + 4*jt
                c = "0" if k == 0 else ar(acc, 4)
                A(f"v_mfma_f32_16x16x32_bf16 {ar(acc,4)}, {vr(b+4*jt,4)}, {vr(b+16+4*tt,4)}, {c}")
        if k + P < 14:
            ld(k + P)
    A("s_lshl_b32 s15, s4, 12")
    A("v_add_u32 v7, s15, v2")
    for tt in range(4):
        A(f"s_cmp_eq_u32 s4, {tt}")
        A(f"s_cbranch_scc1 k4_skip{tt}")
        for jt in range(4):
            A(f"ds_write_b128 v7, {ar(16*tt+4*jt,4)} offset:{tt*16384 + jt*1024}")
        A.label(f"k4_skip{tt}")
    for tt in range(4):
        A(f"s_cmp_lg_u32 s4, {tt}")
        A(f"s_cbranch_scc1 k4_own{tt}")
        for j in range(16):
            A(f"v_accvgpr_read_b32 v{8+j}, a{16*tt+j}")
        A.label(f"k4_own{tt}")
    A("s_waitcnt lgkmcnt(0)")
    A("s_barrier")
    A("s_lshl_b32 s15, s4, 14")
    for s in range(1, 4):
        A(f"s_add_u32 s16, s4, {s}")
        A("s_and_b32 s16, s16, 3")
        A("s_lshl_b32 s16, s16, 12")
        A("s_add_u32 s16, s16, s15")
        A(f"v_add_u32 v{24+s}, s16, v2")
    R = 32
    for s in range(1, 4):
        for jt in range(4):
            A(f"ds_read_b128 {vr(R+16*(s-1)+4*jt,4)}, v{24+s} offset:{jt*1024}")
    GB, X2 = 80, 96
    for j in range(16):
        A(f"v_accvgpr_read_b32 v{GB+j}, a{64+j}")
    for j in range(8):
        A(f"v_accvgpr_read_b32 v{112+j}, a{80+j}")
    for j in range(8):
        unpack2(A, X2+2*j, X2+2*j+1, 112+j)
    for s in range(3):
        A(f"s_waitcnt lgkmcnt({4*(2-s)})")
        for p in range(8):
            A(f"v_pk_add_f32 {vr(8+2*p,2)}, {vr(8+2*p,2)}, {vr(R+16*s+2*p,2)}")

    def rnd():
        for p in range(8):
            A(f"v_cvt_pk_bf16_f32 v{112+p}, v{8+2*p}, v{9+2*p}")
        for p in range(8):
            unpack2(A, 8+2*p, 9+2*p, 112+p)
    rnd()
    for p in range(8):
        A(f"v_pk_mul_f32 {vr(8+2*p,2)}, {vr(8+2*p,2)}, {vr(GB+2*p,2)}")
    rnd()
    for p in range(8):
        A(f"v_pk_add_f32 {vr(8+2*p,2)}, {vr(8+2*p,2)}, {vr(X2+2*p,2)}")
    for p in range(8):
        A(f"v_cvt_pk_bf16_f32 v{112+p}, v{8+2*p}, v{9+2*p}")
    A("buffer_store_dwordx4 v[112:115], v6, s[64:67], s10 offen")
    A("buffer_store_dwordx4 v[116:119], v6, s[64:67], s10 offen offset:16")
    A.label("k4_kernel_exit")
    A("s_endpgm")


KERNELS = [("k3_kernel", gen_k3, K3_NWG, 512, K3_LDS, 232, 0),
           ("k4_kernel", gen_k4, K4_NWG, 256, K4_LDS, 248, 88)]
```

```python
import sys, math
from asmlib import *

L, D, N, F = 2048, 448, 256, 1792
MOD_OFF = 0x0;        MOD_SZ = 2688 * 4
XNT_OFF = 0x10000;    XT_OFF = 0x200000;  XT_SZ = D * L * 2
TAPS_OFF = 0x400000;  TAP_STRIDE = 2304;  TAPS_SZ = D * TAP_STRIDE
X2T_OFF = 0x500000
W1F_OFF = 0x700000;   W1F_SZ = 112 * 14 * 2 * 1024
SB_OFF = 0xA80000;    SB_SZ = 4 * F * 4
W2F_OFF = 0xB00000;   W2F_SZ = 28 * 56 * 1024
HHF_OFF = 0xD00000;   HHF_SZ = 128 * 56 * 1024
X2N_OFF = 0x1400000
LOG2E = 1.4426950408889634

P_U, P_LAR, P_AIM, P_CR, P_CI, P_LDT, P_DSK, P_BX = 16, 18, 20, 22, 24, 26, 28, 30
P_W1, P_W3, P_W2, P_C, P_WMOD, P_OUT, P_DBG, P_WS = 32, 34, 36, 38, 40, 42, 44, 46


def srd(A, sd, sbase, off, size):
    if off == 0:
        A(f"s_mov_b32 s{sd}, s{sbase}")
        A(f"s_mov_b32 s{sd+1}, s{sbase+1}")
    else:
        A(f"s_add_u32 s{sd}, s{sbase}, 0x{off:x}")
        A(f"s_addc_u32 s{sd+1}, s{sbase+1}, 0")
    A(f"s_mov_b32 s{sd+2}, 0x{size:x}")
    A(f"s_mov_b32 s{sd+3}, 0x20000")


def prologue(A, name, nwg):
    A.raw(f".globl {name}")
    A.raw(".p2align 8")
    A.raw(f".type {name},@function")
    A.raw(f"{name}:")
    A(f"s_cmp_ge_u32 s2, {nwg}")
    A(f"s_cbranch_scc1 {name}_exit")
    A("s_load_dwordx16 s[16:31], s[0:1], 0")
    A("s_load_dwordx16 s[32:47], s[0:1], 64")
    A("v_and_b32 v1, 63, v0")
    A("v_lshrrev_b32 v2, 6, v0")
    A("v_readfirstlane_b32 s4, v2")
    A("s_waitcnt lgkmcnt(0)")


def round_bf16(A, dst, src, tmp=None):
    A(f"v_cvt_pk_bf16_f32 v{dst}, v{src}, v{src}")
    A(f"v_lshlrev_b32 v{dst}, 16, v{dst}")


def unpack2(A, lo, hi, src):
    A(f"v_lshlrev_b32 v{lo}, 16, v{src}")
    A(f"v_and_b32 v{hi}, 0xffff0000, v{src}")


def dpp_reduce(A, regs):
    for mod in ("row_shr:1 row_mask:0xf bank_mask:0xf bound_ctrl:0", "row_shr:2 row_mask:0xf bank_mask:0xf bound_ctrl:0",
                "row_shr:4 row_mask:0xf bank_mask:0xf bound_ctrl:0", "row_shr:8 row_mask:0xf bank_mask:0xf bound_ctrl:0",
                "row_bcast:15 row_mask:0xa bank_mask:0xf", "row_bcast:31 row_mask:0xc bank_mask:0xf"):
        for r in regs:
            A(f"v_add_f32_dpp v{r}, v{r}, v{r} {mod}")


K1_LN, K1_MOD, K1_W2, K1_KG = 64, 42, 56, 448
K1_NWG = K1_LN + K1_MOD + K1_W2 + K1_KG
K1_LDS = 29184


def k1_ln(A):
    RS = 912
    A.label("k1_ln")
    A("s_and_b32 s5, s2, 7")
    A("s_lshl_b32 s5, s5, 3")
    A("s_lshr_b32 s6, s2, 3")
    A("s_add_u32 s5, s5, s6")
    A("s_lshl_b32 s5, s5, 5")
    srd(A, 48, P_U, 0, XT_SZ)
    srd(A, 52, P_WS, XT_OFF, XT_SZ)
    srd(A, 56, P_WS, XNT_OFF, XT_SZ)
    A("s_lshl_b32 s6, s4, 3")
    A("s_add_u32 s6, s6, s5")
    A("s_mul_i32 s6, s6, 896")
    A("s_add_u32 s7, s6, 3584")
    A("v_lshlrev_b32 v3, 4, v1")
    A("v_mov_b32 v4, 0x7ffffff0")
    A("v_cmp_gt_u32 vcc, 56, v1")
    A("v_cndmask_b32 v4, v4, v3, vcc")
    XP = 8
    XU = 40
    for r in range(8):
        A(f"buffer_load_dwordx4 {vr(XP+4*r,4)}, v4, s[48:51], s{6 if r < 4 else 7} offen offset:{(r%4)*896}")
    A(f"s_mul_i32 s8, s4, {8*RS}")
    A("v_add_u32 v5, s8, v3")
    A("v_lshrrev_b32 v6, 4, v1")
    A("v_bfe_u32 v7, v1, 2, 2")
    A("v_lshl_add_u32 v7, v6, 3, v7")
    A(f"v_mul_u32_u24 v7, {RS}, v7")
    A("v_and_b32 v104, 3, v1")
    A("v_lshl_add_u32 v7, v104, 3, v7")
    A("s_lshl_b32 s9, s4, 5")
    A("v_add_u32 v7, s9, v7")
    A("v_and_b32 v104, 15, v1")
    A("s_lshl_b32 s9, s4, 4")
    A("v_add_u32 v104, s9, v104")
    A("v_lshlrev_b32 v104, 12, v104")
    A("v_lshl_add_u32 v6, v6, 4, v104")
    A("s_lshl_b32 s10, s5, 1")
    A("s_waitcnt vmcnt(0)")

    def tile_out(srcbase, srdn):
        A("s_mov_b32 exec_hi, 0x00ffffff")
        for r in range(8):
            A(f"ds_write_b128 v5, {vr(srcbase+4*r,4)} offset:{r*RS}")
        A("s_mov_b32 exec_hi, -1")
        A("s_waitcnt lgkmcnt(0)")
        A("s_barrier")
        T = 108
        for i in range(7):
            for hf in range(2):
                A(f"ds_read_b64_tr_b16 {vr(T+4*i+2*hf,2)}, v7 offset:{hf*4*RS + i*128}")
        A("s_mov_b32 s11, s10")
        for i in range(7):
            A(f"s_waitcnt lgkmcnt({2*(6-i)})")
            A(f"buffer_store_dwordx4 {vr(T+4*i,4)}, v6, s[{srdn}:{srdn+3}], s11 offen")
            if i < 6:
                A("s_add_u32 s11, s11, 0x40000")

    tile_out(XP, 52)
    for r in range(8):
        for j in range(4):
            unpack2(A, XU+8*r+2*j, XU+8*r+2*j+1, XP+4*r+j)
    S = 136
    for r in range(8):
        b = XU + 8*r
        A(f"v_pk_add_f32 {vr(144+2*r,2)}, {vr(b,2)}, {vr(b+2,2)}")
    for r in range(8):
        b = XU + 8*r
        A(f"v_pk_add_f32 {vr(160+2*r,2)}, {vr(b+4,2)}, {vr(b+6,2)}")
    for r in range(8):
        A(f"v_pk_add_f32 {vr(144+2*r,2)}, {vr(144+2*r,2)}, {vr(160+2*r,2)}")
    for r in range(8):
        A(f"v_add_f32 v{S+r}, v{144+2*r}, v{145+2*r}")
    dpp_reduce(A, [S+r for r in range(8)])
    for r in range(8):
        A(f"v_readlane_b32 s{60+r}, v{S+r}, 63")
    A(f"v_mov_b32 v104, {f32(1.0/448)}")
    M = 144
    for r in range(8):
        A(f"v_mul_f32 v{M+2*r}, s{60+r}, v104")
    for r in range(8):
        b = XU + 8*r
        for j in range(4):
            A(f"v_pk_add_f32 {vr(160+2*j,2)}, {vr(b+2*j,2)}, {vr(M+2*r,2)} op_sel_hi:[1,0] neg_lo:[0,1] neg_hi:[0,1]")
        A(f"v_pk_mul_f32 {vr(168,2)}, {vr(160,2)}, {vr(160,2)}")
        for j in range(1, 4):
            A(f"v_pk_fma_f32 {vr(168,2)}, {vr(160+2*j,2)}, {vr(160+2*j,2)}, {vr(168,2)}")
        A(f"v_add_f32 v{S+r}, v168, v169")
    for r in range(8):
        A(f"v_cndmask_b32 v{S+r}, 0, v{S+r}, vcc")
    dpp_reduce(A, [S+r for r in range(8)])
    for r in range(8):
        A(f"v_readlane_b32 s{60+r}, v{S+r}, 63")
    for r in range(8):
        A(f"v_mul_f32 v{160+2*r}, s{60+r}, v104")
    for r in range(8):
        round_bf16(A, M+2*r, M+2*r)
        round_bf16(A, 160+2*r, 160+2*r)
    for r in range(8):
        A(f"v_add_f32 v{160+2*r}, {f32(1e-5)}, v{160+2*r}")
    for r in range(8):
        round_bf16(A, 160+2*r, 160+2*r)
    for r in range(8):
        A(f"v_sqrt_f32 v{160+2*r}, v{160+2*r}")
    for r in range(8):
        round_bf16(A, 160+2*r, 160+2*r)
    for r in range(8):
        A(f"v_rcp_f32 v{160+2*r}, v{160+2*r}")
    for r in range(8):
        b = XU + 8*r
        for j in range(4):
            A(f"v_pk_add_f32 {vr(b+2*j,2)}, {vr(b+2*j,2)}, {vr(M+2*r,2)} op_sel_hi:[1,0] neg_lo:[0,1] neg_hi:[0,1]")
        for j in range(4):
            A(f"v_cvt_pk_bf16_f32 v{176+j}, v{b+2*j}, v{b+2*j+1}")
        for j in range(4):
            unpack2(A, b+2*j, b+2*j+1, 176+j)
        for j in range(4):
            A(f"v_pk_mul_f32 {vr(b+2*j,2)}, {vr(b+2*j,2)}, {vr(160+2*r,2)} op_sel_hi:[1,0]")
        for j in range(4):
            A(f"v_cvt_pk_bf16_f32 v{XP+4*r+j}, v{b+2*j}, v{b+2*j+1}")
    A("s_barrier")
    tile_out(XP, 56)
    A("s_endpgm")


def k1_mod(A):
    A.label("k1_mod")
    A(f"s_sub_u32 s5, s2, {K1_LN}")
    srd(A, 48, P_WMOD, 0, 448 * 5376)
    srd(A, 52, P_C, 0, 896)
    srd(A, 56, P_WS, MOD_OFF, MOD_SZ)
    A("v_lshrrev_b32 v3, 3, v0")
    A("v_and_b32 v4, 7, v0")
    A(f"s_mov_b32 s6, {14*5376}")
    A("v_mul_lo_u32 v5, v3, s6")
    A("v_lshl_add_u32 v5, v4, 4, v5")
    A("s_lshl_b32 s7, s5, 7")
    A("v_mul_u32_u24 v6, 28, v3")
    A("buffer_load_dwordx4 v[8:11], v6, s[52:55], 0 offen")
    A("buffer_load_dwordx4 v[12:15], v6, s[52:55], 0 offen offset:16")
    W = 16
    for s in range(14):
        A(f"buffer_load_dwordx4 {vr(W+4*s,4)}, v5, s[48:51], s7 offen")
        if s < 13:
            A("s_add_u32 s7, s7, 5376")
    A("v_mov_b32 v7, 0")
    A("v_lshlrev_b32 v100, 2, v0")
    A("ds_write_b32 v100, v7")
    A("s_waitcnt vmcnt(14)")
    C = 72
    for j in range(7):
        unpack2(A, C+4*j, C+4*j+2, 8+j)
    for s in range(14):
        A(f"v_mul_f32 v{C+2*s+1}, {f32(-LOG2E)}, v{C+2*s}")
    for s in range(14):
        A(f"v_exp_f32 v{C+2*s+1}, v{C+2*s+1}")
    for s in range(14):
        A(f"v_add_f32 v{C+2*s+1}, 1.0, v{C+2*s+1}")
    for s in range(14):
        A(f"v_rcp_f32 v{112+s}, v{C+2*s+1}")
    for s in range(14):
        A(f"v_mul_f32 v{128+s}, v{C+2*s}, v{112+s}")
    for s in range(14):
        A(f"v_fma_f32 v{C+2*s}, -v{128+s}, v{C+2*s+1}, v{C+2*s}")
    for s in range(14):
        A(f"v_fma_f32 v{C+2*s}, v{C+2*s}, v{112+s}, v{128+s}")
    for s in range(14):
        round_bf16(A, C+2*s, C+2*s)
    ACC = 104
    T = 112
    for s in range(14):
        A(f"s_waitcnt vmcnt({13-s})")
        for j in range(4):
            unpack2(A, T+2*j, T+2*j+1, W+4*s+j)
        for j in range(4):
            if s == 0:
                A(f"v_pk_mul_f32 {vr(ACC+2*j,2)}, {vr(T+2*j,2)}, {vr(C+2*s,2)} op_sel_hi:[1,0]")
            else:
                A(f"v_pk_fma_f32 {vr(ACC+2*j,2)}, {vr(T+2*j,2)}, {vr(C+2*s,2)}, {vr(ACC+2*j,2)} op_sel_hi:[1,0,1]")
    A("s_waitcnt lgkmcnt(0)")
    A("s_barrier")
    A("v_lshlrev_b32 v101, 5, v4")
    for j in range(8):
        A(f"ds_add_f32 v101, v{ACC+j} offset:{4*j}")
    A("s_waitcnt lgkmcnt(0)")
    A("s_barrier")
    A("s_cmp_lg_u32 s4, 0")
    A("s_cbranch_scc1 k1_kernel_exit")
    A("ds_read_b32 v8, v100")
    A("s_lshl_b32 s7, s5, 8")
    A("s_waitcnt lgkmcnt(0)")
    round_bf16(A, 8, 8)
    A("buffer_store_dword v8, v100, s[56:59], s7 offen")
    A("s_endpgm")


def k1_w2(A):
    A.label("k1_w2")
    A(f"s_sub_u32 s5, s2, {K1_LN + K1_MOD}")
    srd(A, 48, P_W2, 0, F * D * 2)
    srd(A, 52, P_WS, W2F_OFF, W2F_SZ)
    A("v_lshlrev_b32 v3, 4, v1")
    A("s_mul_i32 s6, s5, 28672")
    A("s_lshl_b32 s7, s4, 10")
    A("s_add_u32 s6, s6, s7")
    for i in range(7):
        A("s_mov_b32 m0, s7")
        A("buffer_load_dwordx4 v3, s[48:51], s6 offen lds")
        if i < 6:
            A("s_add_u32 s6, s6, 4096")
            A("s_add_u32 s7, s7, 4096")
    A("v_lshrrev_b32 v4, 2, v1")
    A("v_mul_u32_u24 v4, 896, v4")
    A("v_and_b32 v5, 3, v1")
    A("v_lshl_add_u32 v4, v5, 5, v4")
    A("s_lshl_b32 s8, s4, 3")
    A("v_add_u32 v4, s8, v4")
    A("s_lshl_b32 s9, s5, 2")
    A("s_add_u32 s9, s9, s4")
    A("s_lshl_b32 s9, s9, 10")
    A("s_waitcnt vmcnt(0)")
    A("s_barrier")
    T = 8
    for d4 in range(7):
        for hf in range(2):
            A(f"ds_read_b64_tr_b16 {vr(T+4*d4+2*hf,2)}, v4 offset:{hf*16*896 + d4*128}")
    for d4 in range(7):
        A(f"s_waitcnt lgkmcnt({2*(6-d4)})")
        A(f"buffer_store_dwordx4 {vr(T+4*d4,4)}, v3, s[52:55], s9 offen")
        if d4 < 6:
            A(f"s_add_u32 s9, s9, {56*4*1024}")
    A("s_endpgm")


def k1_kgen(A):
    IMG = 4096
    A.label("k1_kgen")
    A(f"s_sub_u32 s5, s2, {K1_LN + K1_MOD + K1_W2}")
    srd(A, 48, P_LAR, 0, D * N * 2)
    srd(A, 52, P_AIM, 0, D * N * 2)
    srd(A, 56, P_CR, 0, D * N * 2)
    srd(A, 60, P_CI, 0, D * N * 2)
    srd(A, 64, P_LDT, 0, D * 2)
    srd(A, 68, P_WS, TAPS_OFF, TAPS_SZ)
    A("s_lshl_b32 s6, s5, 9")
    A("s_lshl_b32 s7, s5, 1")
    A("v_lshlrev_b32 v3, 1, v0")
    A("buffer_load_ushort v4, v3, s[48:51], s6 offen")
    A("buffer_load_ushort v5, v3, s[52:55], s6 offen")
    A("buffer_load_ushort v6, v3, s[56:59], s6 offen")
    A("buffer_load_ushort v7, v3, s[60:63], s6 offen")
    A("buffer_load_ushort v8, off, s[64:67], s7")
    for j in range(4):
        A(f"v_mov_b32 v{12+j}, 0")
    A("v_lshlrev_b32 v9, 4, v0")
    A(f"ds_write_b128 v9, v[12:15] offset:{IMG}")
    A("v_and_b32 v10, 31, v0")
    A("v_lshlrev_b32 v10, 4, v10")
    A(f"ds_write_b128 v10, v[12:15] offset:{IMG+4096}")
    A("v_and_b32 v16, 15, v1")
    A("v_lshrrev_b32 v17, 4, v1")
    PT = [20, 22, 24, 26]
    A("v_and_b32 v18, 7, v16")
    A("v_lshrrev_b32 v19, 3, v16")
    A("v_lshl_add_u32 v20, v19, 7, v18")
    A("v_lshrrev_b32 v18, 2, v16")
    A("v_lshlrev_b32 v18, 7, v18")
    A("v_and_b32 v19, 3, v16")
    A("v_lshl_add_u32 v18, v19, 1, v18")
    A("v_add_u32 v18, 256, v18")
    A("v_lshrrev_b32 v19, 1, v16")
    A("v_lshlrev_b32 v19, 7, v19")
    A("v_and_b32 v21, 1, v16")
    A("v_lshl_add_u32 v19, v21, 2, v19")
    A("v_cmp_gt_u32 vcc, 8, v16")
    A("v_cndmask_b32 v22, v19, v18, vcc")
    A("v_lshlrev_b32 v18, 7, v16")
    A("v_add_u32 v18, 1024, v18")
    A("v_min_u32 v24, 2048, v18")
    A("v_lshlrev_b32 v26, 3, v16")
    for p in PT:
        A(f"v_cvt_f32_u32 v{p}, v{p}")
    A("v_and_b32 v18, 1, v17")
    A("v_lshrrev_b32 v19, 1, v17")
    A("v_lshlrev_b32 v28, 3, v16")
    A("v_lshl_add_u32 v28, v18, 2, v28")
    A("v_lshl_add_u32 v28, v19, 7, v28")
    A("v_sub_u32 v28, 284, v28")
    A("v_lshlrev_b32 v28, 2, v28")
    A("v_lshlrev_b32 v18, 5, v17")
    A("v_lshl_add_u32 v19, v16, 1, v18")
    A("v_sub_u32 v19, 415, v19")
    A("v_add_u32 v21, v16, v18")
    A("v_sub_u32 v21, 735, v21")
    A("v_cmp_gt_u32 vcc, 2, v17")
    A("v_cndmask_b32 v29, v21, v19, vcc")
    A("v_mov_b32 v19, 16")
    A("v_cndmask_b32 v30, v19, 1, vcc")
    A("v_sub_u32 v30, v29, v30")
    A("v_lshlrev_b32 v29, 2, v29")
    A("v_lshlrev_b32 v30, 2, v30")
    A("v_and_b32 v19, 1, v16")
    A("v_lshlrev_b32 v19, 7, v19")
    A("v_lshrrev_b32 v21, 1, v16")
    A("v_add_u32 v21, v21, v18")
    A("v_sub_u32 v31, v19, v21")
    A("v_add_u32 v31, 903, v31")
    A("v_lshlrev_b32 v31, 2, v31")
    A("v_mul_u32_u24 v32, 896, v17")
    A("v_add_u32 v32, 128, v32")
    A("v_lshlrev_b32 v33, 6, v17")
    A("s_lshl_b32 s8, s4, 10")
    A("v_add_u32 v33, s8, v33")
    A("s_waitcnt vmcnt(0)")
    for r in (4, 5, 6, 7, 8):
        A(f"v_lshlrev_b32 v{r}, 16, v{r}")
    A(f"v_mul_f32 v8, {f32(LOG2E)}, v8")
    A(f"v_mul_f32 v4, {f32(LOG2E)}, v4")
    A("v_exp_f32 v8, v8")
    A("v_exp_f32 v4, v4")
    round_bf16(A, 8, 8)
    round_bf16(A, 4, 4)
    A("v_mul_f32 v12, v4, v8")
    A(f"v_mul_f32 v12, {f32(-LOG2E)}, v12")
    A("v_mul_f32 v13, v5, v8")
    A(f"v_mul_f32 v13, {f32(1.0/(2*math.pi))}, v13")
    A("v_mul_f32 v14, v6, v8")
    A("v_add_f32 v14, v14, v14")
    A("v_mul_f32 v15, v7, v8")
    A("v_add_f32 v15, v15, v15")
    A("ds_write_b128 v9, v[12:15]")
    A("s_waitcnt lgkmcnt(0)")
    A("s_barrier")
    PB = [36, 52]
    FR = [68, 72, 76, 80]
    TA = [84, 86, 88, 90]
    TB = [92, 94, 96, 98]
    TY = 100
    ACC = [104, 108, 112]

    def rd(s):
        for q in range(4):
            A(f"ds_read_b128 {vr(PB[s%2]+4*q,4)}, v33 offset:{(16*s+q)*16}")
    rd(0)
    for s in range(4):
        if s < 3:
            rd(s + 1)
            A("s_waitcnt lgkmcnt(4)")
        else:
            A("s_waitcnt lgkmcnt(0)")
        for q in range(4):
            P = PB[s % 2] + 4*q
            for T in range(4):
                A(f"v_pk_mul_f32 {vr(TA[T],2)}, {vr(P,2)}, {vr(PT[T],2)} op_sel_hi:[1,0]")
            for T in range(4):
                A(f"v_fract_f32 v{TA[T]+1}, v{TA[T]+1}")
            for T in range(4):
                A(f"v_exp_f32 v{TA[T]}, v{TA[T]}")
            for T in range(4):
                A(f"v_cos_f32 v{TB[T]}, v{TA[T]+1}")
                A(f"v_sin_f32 v{TB[T]+1}, v{TA[T]+1}")
            for T in (3, 0, 1, 2):
                A(f"v_pk_mul_f32 {vr(TB[T],2)}, {vr(TB[T],2)}, {vr(TA[T],2)} op_sel_hi:[1,0]")
            A(f"v_pk_mul_f32 {vr(TY,2)}, {vr(TB[3],2)}, {vr(P+2,2)} op_sel:[0,0] op_sel_hi:[0,1] neg_hi:[0,1]")
            for T in range(3):
                A(f"v_cvt_pk_bf16_f32 v{FR[T]+q}, v{TB[T]}, v{TB[T]+1}")
            A(f"v_pk_fma_f32 {vr(TY,2)}, {vr(TB[3],2)}, {vr(P+2,2)}, {vr(TY,2)} op_sel:[1,1,0] op_sel_hi:[1,0,1] neg_lo:[1,0,0] neg_hi:[1,0,0]")
            A(f"v_cvt_pk_bf16_f32 v{FR[3]+q}, v{TY}, v{TY+1}")
        for T in range(3):
            c = "0" if s == 0 else vr(ACC[T], 4)
            A(f"v_mfma_f32_16x16x32_bf16 {vr(ACC[T],4)}, {vr(FR[T],4)}, {vr(FR[3],4)}, {c}")
    for i in range(4):
        A(f"ds_add_f32 v28, v{ACC[0]+i} offset:{IMG + 4*(3-i)}")
    for i in range(4):
        A(f"ds_add_f32 v{29 if i < 2 else 30}, v{ACC[1]+i} offset:{IMG + 512*(i%2)}")
    A("s_mov_b32 exec_hi, 0x0000ffff")
    A(f"ds_add_f32 v31, v{ACC[2]} offset:{IMG + 96}")
    A("s_mov_b32 exec_hi, 0")
    for i in range(1, 4):
        A(f"ds_add_f32 v31, v{ACC[2]+i} offset:{IMG + 32*(3-i)}")
    A("s_mov_b32 exec_lo, 1")
    A("s_mov_b32 exec_hi, 1")
    A(f"v_sub_f32 v34, 0, v{ACC[1]}")
    A(f"ds_add_f32 v32, v34 offset:{IMG}")
    A("s_mov_b64 exec, -1")
    A("s_waitcnt lgkmcnt(0)")
    A("s_barrier")
    A("v_cmp_gt_u32 vcc, 136, v0")
    A("s_and_saveexec_b64 s[10:11], vcc")
    A("s_cbranch_execz k1_kernel_exit")
    A("v_lshlrev_b32 v10, 5, v0")
    A(f"ds_read_b128 v[36:39], v10 offset:{IMG}")
    A(f"ds_read_b128 v[40:43], v10 offset:{IMG+16}")
    A(f"s_mul_i32 s8, s5, {TAP_STRIDE}")
    A("v_mov_b32 v12, -1")
    A("v_mov_b32 v13, 0xffff")
    A("v_cmp_eq_u32 vcc, 115, v0")
    A("v_cndmask_b32 v12, v12, v13, vcc")
    A("s_waitcnt lgkmcnt(0)")
    for j in range(4):
        A(f"v_cvt_pk_bf16_f32 v{44+j}, v{36+2*j}, v{37+2*j}")
    A("v_and_b32 v47, v47, v12")
    A("buffer_store_dwordx4 v[44:47], v9, s[68:71], s8 offen")
    A("s_and_saveexec_b64 s[10:11], vcc")
    A("s_cbranch_execz k1_kernel_exit")
    A("buffer_store_dword v43, off, s[68:71], s8 offset:2176")
    A("s_endpgm")


def gen_k1(A):
    prologue(A, "k1_kernel", K1_NWG)
    A(f"s_cmp_lt_u32 s2, {K1_LN}")
    A("s_cbranch_scc1 k1_ln")
    A(f"s_cmp_lt_u32 s2, {K1_LN + K1_MOD}")
    A("s_cbranch_scc1 k1_mod")
    A(f"s_cmp_lt_u32 s2, {K1_LN + K1_MOD + K1_W2}")
    A("s_cbranch_scc1 k1_w2")
    k1_kgen(A)
    k1_ln(A)
    k1_mod(A)
    k1_w2(A)
    A.label("k1_kernel_exit")
    A("s_endpgm")


def descriptor(name, vgpr, sgpr=96, agpr=0):
    acc = (vgpr + 3) // 4 * 4
    return f""".p2align 6
.amdhsa_kernel {name}
  .amdhsa_next_free_vgpr {acc + agpr if agpr else vgpr}
  .amdhsa_next_free_sgpr {sgpr}
  .amdhsa_accum_offset {acc}
  .amdhsa_group_segment_fixed_size 0
  .amdhsa_kernarg_size 128
  .amdhsa_user_sgpr_count 2
  .amdhsa_user_sgpr_kernarg_segment_ptr 1
  .amdhsa_system_sgpr_workgroup_id_x 1
.end_amdhsa_kernel
"""


def build(kernels):
    head = ["; adaLN + S4D long conv + SwiGLU FFN, gfx950. Generated by a hand-written generator script."]
    for (name, fn, nwg, block, lds, vg, ag) in kernels:
        head.append(f"; @launch kernel={name} grid=({nwg},1,1) block=({block},1,1) lds={lds}")
    A = Asm()
    A.raw('.amdgcn_target "amdgcn-amd-amdhsa--gfx950"')
    A.raw(".text")
    for (name, fn, nwg, block, lds, vg, ag) in kernels:
        A.window = []
        fn(A)
    out = "\n".join(head) + "\n" + A.text()
    out += '.section .rodata,"a"\n'
    for (name, fn, nwg, block, lds, vg, ag) in kernels:
        out += descriptor(name, vg, 96, ag)
    return out


KERNELS = [("k1_kernel", gen_k1, K1_NWG, 256, K1_LDS, 180, 0)]

if __name__ == "__main__":
    try:
        import gen2
        KERNELS = gen2.KERNELS
    except ImportError:
        pass
    n = int(sys.argv[2]) if len(sys.argv) > 2 else len(KERNELS)
    open(sys.argv[1], "w").write(build(KERNELS[:n]))
```

```python
import sys, math
from asmlib import *

L, D, N, F = 2048, 448, 256, 1792
MOD_OFF = 0x0;        MOD_SZ = 2688 * 4
XNT_OFF = 0x10000;    XT_OFF = 0x200000;  XT_SZ = D * L * 2
TAPS_OFF = 0x400000;  TAP_STRIDE = 2304;  TAPS_SZ = D * TAP_STRIDE
X2T_OFF = 0x500000
W1F_OFF = 0x700000;   W1F_SZ = 112 * 14 * 2 * 1024
SB_OFF = 0xA80000;    SB_SZ = 4 * F * 4
W2F_OFF = 0xB00000;   W2F_SZ = 28 * 56 * 1024
HHF_OFF = 0xD00000;   HHF_SZ = 128 * 56 * 1024
X2N_OFF = 0x1400000
LOG2E = 1.4426950408889634

P_U, P_LAR, P_AIM, P_CR, P_CI, P_LDT, P_DSK, P_BX = 16, 18, 20, 22, 24, 26, 28, 30
P_W1, P_W3, P_W2, P_C, P_WMOD, P_OUT, P_DBG, P_WS = 32, 34, 36, 38, 40, 42, 44, 46


def srd(A, sd, sbase, off, size):
    if off == 0:
        A(f"s_mov_b32 s{sd}, s{sbase}")
        A(f"s_mov_b32 s{sd+1}, s{sbase+1}")
    else:
        A(f"s_add_u32 s{sd}, s{sbase}, 0x{off:x}")
        A(f"s_addc_u32 s{sd+1}, s{sbase+1}, 0")
    A(f"s_mov_b32 s{sd+2}, 0x{size:x}")
    A(f"s_mov_b32 s{sd+3}, 0x20000")


def prologue(A, name, nwg):
    A.raw(f".globl {name}")
    A.raw(".p2align 8")
    A.raw(f".type {name},@function")
    A.raw(f"{name}:")
    A(f"s_cmp_ge_u32 s2, {nwg}")
    A(f"s_cbranch_scc1 {name}_exit")
    if PROF:
        for i in range(80, 100):
            A(f"s_mov_b32 s{i}, 0")
        A("s_memrealtime s[96:97]")
        A("s_memtime s[80:81]")
    A("s_load_dwordx16 s[16:31], s[0:1], 0")
    A("s_load_dwordx16 s[32:47], s[0:1], 64")
    A("v_and_b32 v1, 63, v0")
    A("v_lshrrev_b32 v2, 6, v0")
    A("v_readfirstlane_b32 s4, v2")
    A("s_waitcnt lgkmcnt(0)")


import os
PROF = os.environ.get("PROF", "0") == "1"
PROF_OFF = 0x2000000
_nst = [0]


def stamp(A, idx):
    if not PROF:
        return
    A(f"s_memtime s[{80+2*idx}:{81+2*idx}]")


def finish(A, kern):
    if PROF:
        A("s_waitcnt vmcnt(0) lgkmcnt(0)")
        A("s_memtime s[94:95]")
        A("s_memrealtime s[98:99]")
        A("s_waitcnt vmcnt(0) lgkmcnt(0)")
        A(f"s_add_u32 s48, s46, 0x{PROF_OFF + kern*0x100000:x}")
        A("s_addc_u32 s49, s47, 0")
        A("s_mov_b32 s50, 0x100000")
        A("s_mov_b32 s51, 0x20000")
        A("s_lshl_b32 s5, s2, 3")
        A("s_add_u32 s5, s5, s4")
        A("s_lshl_b32 s5, s5, 7")
        A("s_mov_b64 exec, 1")
        for i in range(10):
            A(f"v_mov_b32 v0, s{80+2*i}")
            A(f"v_mov_b32 v1, s{81+2*i}")
            A(f"buffer_store_dwordx2 v[0:1], off, s[48:51], s5 offset:{8*i}")
        A("s_waitcnt vmcnt(0)")
    A("s_endpgm")


def round_bf16(A, dst, src, tmp=None):
    A(f"v_cvt_pk_bf16_f32 v{dst}, v{src}, v{src}")
    A(f"v_lshlrev_b32 v{dst}, 16, v{dst}")


def unpack2(A, lo, hi, src):
    A(f"v_lshlrev_b32 v{lo}, 16, v{src}")
    A(f"v_and_b32 v{hi}, 0xffff0000, v{src}")


def dpp_reduce(A, regs):
    for mod in ("row_shr:1 row_mask:0xf bank_mask:0xf bound_ctrl:0", "row_shr:2 row_mask:0xf bank_mask:0xf bound_ctrl:0",
                "row_shr:4 row_mask:0xf bank_mask:0xf bound_ctrl:0", "row_shr:8 row_mask:0xf bank_mask:0xf bound_ctrl:0",
                "row_bcast:15 row_mask:0xa bank_mask:0xf", "row_bcast:31 row_mask:0xc bank_mask:0xf"):
        for r in regs:
            A(f"v_add_f32_dpp v{r}, v{r}, v{r} {mod}")


K1_LN, K1_MOD, K1_W2, K1_KG = 64, 42, 56, 448
K1_NWG = K1_LN + K1_MOD + K1_W2 + K1_KG
K1_LDS = 29184


def k1_ln(A):
    RS = 912
    A.label("k1_ln")
    A("s_and_b32 s5, s2, 7")
    A("s_lshl_b32 s5, s5, 3")
    A("s_lshr_b32 s6, s2, 3")
    A("s_add_u32 s5, s5, s6")
    A("s_lshl_b32 s5, s5, 5")
    srd(A, 48, P_U, 0, XT_SZ)
    srd(A, 52, P_WS, XT_OFF, XT_SZ)
    srd(A, 56, P_WS, XNT_OFF, XT_SZ)
    A("s_lshl_b32 s6, s4, 3")
    A("s_add_u32 s6, s6, s5")
    A("s_mul_i32 s6, s6, 896")
    A("s_add_u32 s7, s6, 3584")
    A("v_lshlrev_b32 v3, 4, v1")
    A("v_mov_b32 v4, 0x7ffffff0")
    A("v_cmp_gt_u32 vcc, 56, v1")
    A("v_cndmask_b32 v4, v4, v3, vcc")
    XP = 8
    XU = 40
    for r in range(8):
        A(f"buffer_load_dwordx4 {vr(XP+4*r,4)}, v4, s[48:51], s{6 if r < 4 else 7} offen offset:{(r%4)*896}")
    A(f"s_mul_i32 s8, s4, {8*RS}")
    A("v_add_u32 v5, s8, v3")
    A("v_lshrrev_b32 v6, 4, v1")
    A("v_bfe_u32 v7, v1, 2, 2")
    A("v_lshl_add_u32 v7, v6, 3, v7")
    A(f"v_mul_u32_u24 v7, {RS}, v7")
    A("v_and_b32 v104, 3, v1")
    A("v_lshl_add_u32 v7, v104, 3, v7")
    A("s_lshl_b32 s9, s4, 5")
    A("v_add_u32 v7, s9, v7")
    A("v_and_b32 v104, 15, v1")
    A("s_lshl_b32 s9, s4, 4")
    A("v_add_u32 v104, s9, v104")
    A("v_lshlrev_b32 v104, 12, v104")
    A("v_lshl_add_u32 v6, v6, 4, v104")
    A("s_lshl_b32 s10, s5, 1")
    A("s_waitcnt vmcnt(0)")

    def tile_out(srcbase, srdn):
        A("s_mov_b32 exec_hi, 0x00ffffff")
        for r in range(8):
            A(f"ds_write_b128 v5, {vr(srcbase+4*r,4)} offset:{r*RS}")
        A("s_mov_b32 exec_hi, -1")
        A("s_waitcnt lgkmcnt(0)")
        A("s_barrier")
        T = 108
        for i in range(7):
            for hf in range(2):
                A(f"ds_read_b64_tr_b16 {vr(T+4*i+2*hf,2)}, v7 offset:{hf*4*RS + i*128}")
        A("s_mov_b32 s11, s10")
        for i in range(7):
            A(f"s_waitcnt lgkmcnt({2*(6-i)})")
            A(f"buffer_store_dwordx4 {vr(T+4*i,4)}, v6, s[{srdn}:{srdn+3}], s11 offen")
            if i < 6:
                A("s_add_u32 s11, s11, 0x40000")

    stamp(A, 1)
    tile_out(XP, 52)
    stamp(A, 2)
    for r in range(8):
        for j in range(4):
            unpack2(A, XU+8*r+2*j, XU+8*r+2*j+1, XP+4*r+j)
    S = 136
    for r in range(8):
        b = XU + 8*r
        A(f"v_pk_add_f32 {vr(144+2*r,2)}, {vr(b,2)}, {vr(b+2,2)}")
    for r in range(8):
        b = XU + 8*r
        A(f"v_pk_add_f32 {vr(160+2*r,2)}, {vr(b+4,2)}, {vr(b+6,2)}")
    for r in range(8):
        A(f"v_pk_add_f32 {vr(144+2*r,2)}, {vr(144+2*r,2)}, {vr(160+2*r,2)}")
    for r in range(8):
        A(f"v_add_f32 v{S+r}, v{144+2*r}, v{145+2*r}")
    dpp_reduce(A, [S+r for r in range(8)])
    for r in range(8):
        A(f"v_readlane_b32 s{60+r}, v{S+r}, 63")
    A(f"v_mov_b32 v104, {f32(1.0/448)}")
    M = 144
    for r in range(8):
        A(f"v_mul_f32 v{M+2*r}, s{60+r}, v104")
    for r in range(8):
        b = XU + 8*r
        for j in range(4):
            A(f"v_pk_add_f32 {vr(160+2*j,2)}, {vr(b+2*j,2)}, {vr(M+2*r,2)} op_sel_hi:[1,0] neg_lo:[0,1] neg_hi:[0,1]")
        A(f"v_pk_mul_f32 {vr(168,2)}, {vr(160,2)}, {vr(160,2)}")
        for j in range(1, 4):
            A(f"v_pk_fma_f32 {vr(168,2)}, {vr(160+2*j,2)}, {vr(160+2*j,2)}, {vr(168,2)}")
        A(f"v_add_f32 v{S+r}, v168, v169")
    for r in range(8):
        A(f"v_cndmask_b32 v{S+r}, 0, v{S+r}, vcc")
    dpp_reduce(A, [S+r for r in range(8)])
    for r in range(8):
        A(f"v_readlane_b32 s{60+r}, v{S+r}, 63")
    for r in range(8):
        A(f"v_mul_f32 v{160+2*r}, s{60+r}, v104")
    for r in range(8):
        round_bf16(A, M+2*r, M+2*r)
        round_bf16(A, 160+2*r, 160+2*r)
    for r in range(8):
        A(f"v_add_f32 v{160+2*r}, {f32(1e-5)}, v{160+2*r}")
    for r in range(8):
        round_bf16(A, 160+2*r, 160+2*r)
    for r in range(8):
        A(f"v_sqrt_f32 v{160+2*r}, v{160+2*r}")
    for r in range(8):
        round_bf16(A, 160+2*r, 160+2*r)
    for r in range(8):
        A(f"v_rcp_f32 v{160+2*r}, v{160+2*r}")
    for r in range(8):
        b = XU + 8*r
        for j in range(4):
            A(f"v_pk_add_f32 {vr(b+2*j,2)}, {vr(b+2*j,2)}, {vr(M+2*r,2)} op_sel_hi:[1,0] neg_lo:[0,1] neg_hi:[0,1]")
        for j in range(4):
            A(f"v_cvt_pk_bf16_f32 v{176+j}, v{b+2*j}, v{b+2*j+1}")
        for j in range(4):
            unpack2(A, b+2*j, b+2*j+1, 176+j)
        for j in range(4):
            A(f"v_pk_mul_f32 {vr(b+2*j,2)}, {vr(b+2*j,2)}, {vr(160+2*r,2)} op_sel_hi:[1,0]")
        for j in range(4):
            A(f"v_cvt_pk_bf16_f32 v{XP+4*r+j}, v{b+2*j}, v{b+2*j+1}")
    stamp(A, 3)
    A("s_barrier")
    tile_out(XP, 56)
    finish(A, 0)


def k1_mod(A):
    A.label("k1_mod")
    A(f"s_sub_u32 s5, s2, {K1_LN}")
    srd(A, 48, P_WMOD, 0, 448 * 5376)
    srd(A, 52, P_C, 0, 896)
    srd(A, 56, P_WS, MOD_OFF, MOD_SZ)
    A("v_lshrrev_b32 v3, 3, v0")
    A("v_and_b32 v4, 7, v0")
    A(f"s_mov_b32 s6, {14*5376}")
    A("v_mul_lo_u32 v5, v3, s6")
    A("v_lshl_add_u32 v5, v4, 4, v5")
    A("s_lshl_b32 s7, s5, 7")
    A("v_mul_u32_u24 v6, 28, v3")
    A("buffer_load_dwordx4 v[8:11], v6, s[52:55], 0 offen")
    A("buffer_load_dwordx4 v[12:15], v6, s[52:55], 0 offen offset:16")
    W = 16
    for s in range(14):
        A(f"buffer_load_dwordx4 {vr(W+4*s,4)}, v5, s[48:51], s7 offen")
        if s < 13:
            A("s_add_u32 s7, s7, 5376")
    A("v_mov_b32 v7, 0")
    A("v_lshlrev_b32 v100, 2, v0")
    A("ds_write_b32 v100, v7")
    A("s_waitcnt vmcnt(14)")
    C = 72
    for j in range(7):
        unpack2(A, C+4*j, C+4*j+2, 8+j)
    for s in range(14):
        A(f"v_mul_f32 v{C+2*s+1}, {f32(-LOG2E)}, v{C+2*s}")
    for s in range(14):
        A(f"v_exp_f32 v{C+2*s+1}, v{C+2*s+1}")
    for s in range(14):
        A(f"v_add_f32 v{C+2*s+1}, 1.0, v{C+2*s+1}")
    for s in range(14):
        A(f"v_rcp_f32 v{112+s}, v{C+2*s+1}")
    for s in range(14):
        A(f"v_mul_f32 v{128+s}, v{C+2*s}, v{112+s}")
    for s in range(14):
        A(f"v_fma_f32 v{C+2*s}, -v{128+s}, v{C+2*s+1}, v{C+2*s}")
    for s in range(14):
        A(f"v_fma_f32 v{C+2*s}, v{C+2*s}, v{112+s}, v{128+s}")
    for s in range(14):
        round_bf16(A, C+2*s, C+2*s)
    ACC = 104
    T = 112
    for s in range(14):
        A(f"s_waitcnt vmcnt({13-s})")
        for j in range(4):
            unpack2(A, T+2*j, T+2*j+1, W+4*s+j)
        for j in range(4):
            if s == 0:
                A(f"v_pk_mul_f32 {vr(ACC+2*j,2)}, {vr(T+2*j,2)}, {vr(C+2*s,2)} op_sel_hi:[1,0]")
            else:
                A(f"v_pk_fma_f32 {vr(ACC+2*j,2)}, {vr(T+2*j,2)}, {vr(C+2*s,2)}, {vr(ACC+2*j,2)} op_sel_hi:[1,0,1]")
    A("s_waitcnt lgkmcnt(0)")
    A("s_barrier")
    A("v_lshlrev_b32 v101, 5, v4")
    for j in range(8):
        A(f"ds_add_f32 v101, v{ACC+j} offset:{4*j}")
    A("s_waitcnt lgkmcnt(0)")
    A("s_barrier")
    A("s_cmp_lg_u32 s4, 0")
    A("s_cbranch_scc1 k1_kernel_done")
    A("ds_read_b32 v8, v100")
    A("s_lshl_b32 s7, s5, 8")
    A("s_waitcnt lgkmcnt(0)")
    round_bf16(A, 8, 8)
    A("buffer_store_dword v8, v100, s[56:59], s7 offen")
    finish(A, 0)


def k1_w2(A):
    A.label("k1_w2")
    A(f"s_sub_u32 s5, s2, {K1_LN + K1_MOD}")
    srd(A, 48, P_W2, 0, F * D * 2)
    srd(A, 52, P_WS, W2F_OFF, W2F_SZ)
    A("v_lshlrev_b32 v3, 4, v1")
    A("s_mul_i32 s6, s5, 28672")
    A("s_lshl_b32 s7, s4, 10")
    A("s_add_u32 s6, s6, s7")
    for i in range(7):
        A("s_mov_b32 m0, s7")
        A("buffer_load_dwordx4 v3, s[48:51], s6 offen lds")
        if i < 6:
            A("s_add_u32 s6, s6, 4096")
            A("s_add_u32 s7, s7, 4096")
    A("v_lshrrev_b32 v4, 2, v1")
    A("v_mul_u32_u24 v4, 896, v4")
    A("v_and_b32 v5, 3, v1")
    A("v_lshl_add_u32 v4, v5, 5, v4")
    A("s_lshl_b32 s8, s4, 3")
    A("v_add_u32 v4, s8, v4")
    A("s_lshl_b32 s9, s5, 2")
    A("s_add_u32 s9, s9, s4")
    A("s_lshl_b32 s9, s9, 10")
    A("s_waitcnt vmcnt(0)")
    A("s_barrier")
    T = 8
    for d4 in range(7):
        for hf in range(2):
            A(f"ds_read_b64_tr_b16 {vr(T+4*d4+2*hf,2)}, v4 offset:{hf*16*896 + d4*128}")
    for d4 in range(7):
        A(f"s_waitcnt lgkmcnt({2*(6-d4)})")
        A(f"buffer_store_dwordx4 {vr(T+4*d4,4)}, v3, s[52:55], s9 offen")
        if d4 < 6:
            A(f"s_add_u32 s9, s9, {56*4*1024}")
    finish(A, 0)


def k1_kgen(A):
    IMG = 4096
    A.label("k1_kgen")
    A(f"s_sub_u32 s5, s2, {K1_LN + K1_MOD + K1_W2}")
    srd(A, 48, P_LAR, 0, D * N * 2)
    srd(A, 52, P_AIM, 0, D * N * 2)
    srd(A, 56, P_CR, 0, D * N * 2)
    srd(A, 60, P_CI, 0, D * N * 2)
    srd(A, 64, P_LDT, 0, D * 2)
    srd(A, 68, P_WS, TAPS_OFF, TAPS_SZ)
    A("s_lshl_b32 s6, s5, 9")
    A("s_lshl_b32 s7, s5, 1")
    A("v_lshlrev_b32 v3, 1, v0")
    A("buffer_load_ushort v4, v3, s[48:51], s6 offen")
    A("buffer_load_ushort v5, v3, s[52:55], s6 offen")
    A("buffer_load_ushort v6, v3, s[56:59], s6 offen")
    A("buffer_load_ushort v7, v3, s[60:63], s6 offen")
    A("buffer_load_ushort v8, off, s[64:67], s7")
    for j in range(4):
        A(f"v_mov_b32 v{12+j}, 0")
    A("v_lshlrev_b32 v9, 4, v0")
    A(f"ds_write_b128 v9, v[12:15] offset:{IMG}")
    A("v_and_b32 v10, 31, v0")
    A("v_lshlrev_b32 v10, 4, v10")
    A(f"ds_write_b128 v10, v[12:15] offset:{IMG+4096}")
    A("v_and_b32 v16, 15, v1")
    A("v_lshrrev_b32 v17, 4, v1")
    PT = [20, 22, 24, 26]
    A("v_and_b32 v18, 7, v16")
    A("v_lshrrev_b32 v19, 3, v16")
    A("v_lshl_add_u32 v20, v19, 7, v18")
    A("v_lshrrev_b32 v18, 2, v16")
    A("v_lshlrev_b32 v18, 7, v18")
    A("v_and_b32 v19, 3, v16")
    A("v_lshl_add_u32 v18, v19, 1, v18")
    A("v_add_u32 v18, 256, v18")
    A("v_lshrrev_b32 v19, 1, v16")
    A("v_lshlrev_b32 v19, 7, v19")
    A("v_and_b32 v21, 1, v16")
    A("v_lshl_add_u32 v19, v21, 2, v19")
    A("v_cmp_gt_u32 vcc, 8, v16")
    A("v_cndmask_b32 v22, v19, v18, vcc")
    A("v_lshlrev_b32 v18, 7, v16")
    A("v_add_u32 v18, 1024, v18")
    A("v_min_u32 v24, 2048, v18")
    A("v_lshlrev_b32 v26, 3, v16")
    for p in PT:
        A(f"v_cvt_f32_u32 v{p}, v{p}")
    A("v_and_b32 v18, 1, v17")
    A("v_lshrrev_b32 v19, 1, v17")
    A("v_lshlrev_b32 v28, 3, v16")
    A("v_lshl_add_u32 v28, v18, 2, v28")
    A("v_lshl_add_u32 v28, v19, 7, v28")
    A("v_sub_u32 v28, 284, v28")
    A("v_lshlrev_b32 v28, 2, v28")
    A("v_lshlrev_b32 v18, 5, v17")
    A("v_lshl_add_u32 v19, v16, 1, v18")
    A("v_sub_u32 v19, 415, v19")
    A("v_add_u32 v21, v16, v18")
    A("v_sub_u32 v21, 735, v21")
    A("v_cmp_gt_u32 vcc, 2, v17")
    A("v_cndmask_b32 v29, v21, v19, vcc")
    A("v_mov_b32 v19, 16")
    A("v_cndmask_b32 v30, v19, 1, vcc")
    A("v_sub_u32 v30, v29, v30")
    A("v_lshlrev_b32 v29, 2, v29")
    A("v_lshlrev_b32 v30, 2, v30")
    A("v_and_b32 v19, 1, v16")
    A("v_lshlrev_b32 v19, 7, v19")
    A("v_lshrrev_b32 v21, 1, v16")
    A("v_add_u32 v21, v21, v18")
    A("v_sub_u32 v31, v19, v21")
    A("v_add_u32 v31, 903, v31")
    A("v_lshlrev_b32 v31, 2, v31")
    A("v_mul_u32_u24 v32, 896, v17")
    A("v_add_u32 v32, 128, v32")
    A("v_lshlrev_b32 v33, 6, v17")
    A("s_lshl_b32 s8, s4, 10")
    A("v_add_u32 v33, s8, v33")
    A("s_waitcnt vmcnt(0)")
    for r in (4, 5, 6, 7, 8):
        A(f"v_lshlrev_b32 v{r}, 16, v{r}")
    A(f"v_mul_f32 v8, {f32(LOG2E)}, v8")
    A(f"v_mul_f32 v4, {f32(LOG2E)}, v4")
    A("v_exp_f32 v8, v8")
    A("v_exp_f32 v4, v4")
    round_bf16(A, 8, 8)
    round_bf16(A, 4, 4)
    A("v_mul_f32 v12, v4, v8")
    A(f"v_mul_f32 v12, {f32(-LOG2E)}, v12")
    A("v_mul_f32 v13, v5, v8")
    A(f"v_mul_f32 v13, {f32(1.0/(2*math.pi))}, v13")
    A("v_mul_f32 v14, v6, v8")
    A("v_add_f32 v14, v14, v14")
    A("v_mul_f32 v15, v7, v8")
    A("v_add_f32 v15, v15, v15")
    A("ds_write_b128 v9, v[12:15]")
    A("s_waitcnt lgkmcnt(0)")
    A("s_barrier")
    stamp(A, 1)
    PB = [36, 52]
    FR = [68, 72, 76, 80]
    TA = [84, 86, 88, 90]
    TB = [92, 94, 96, 98]
    TY = 100
    ACC = [104, 108, 112]

    def rd(s):
        for q in range(4):
            A(f"ds_read_b128 {vr(PB[s%2]+4*q,4)}, v33 offset:{(16*s+q)*16}")
    rd(0)
    for s in range(4):
        if s < 3:
            rd(s + 1)
            A("s_waitcnt lgkmcnt(4)")
        else:
            A("s_waitcnt lgkmcnt(0)")
        for q in range(4):
            P = PB[s % 2] + 4*q
            for T in range(4):
                A(f"v_pk_mul_f32 {vr(TA[T],2)}, {vr(P,2)}, {vr(PT[T],2)} op_sel_hi:[1,0]")
            for T in range(4):
                A(f"v_fract_f32 v{TA[T]+1}, v{TA[T]+1}")
            for T in range(4):
                A(f"v_exp_f32 v{TA[T]}, v{TA[T]}")
            for T in range(4):
                A(f"v_cos_f32 v{TB[T]}, v{TA[T]+1}")
                A(f"v_sin_f32 v{TB[T]+1}, v{TA[T]+1}")
            for T in (3, 0, 1, 2):
                A(f"v_pk_mul_f32 {vr(TB[T],2)}, {vr(TB[T],2)}, {vr(TA[T],2)} op_sel_hi:[1,0]")
            A(f"v_pk_mul_f32 {vr(TY,2)}, {vr(TB[3],2)}, {vr(P+2,2)} op_sel:[0,0] op_sel_hi:[0,1] neg_hi:[0,1]")
            for T in range(3):
                A(f"v_cvt_pk_bf16_f32 v{FR[T]+q}, v{TB[T]}, v{TB[T]+1}")
            A(f"v_pk_fma_f32 {vr(TY,2)}, {vr(TB[3],2)}, {vr(P+2,2)}, {vr(TY,2)} op_sel:[1,1,0] op_sel_hi:[1,0,1] neg_lo:[1,0,0] neg_hi:[1,0,0]")
            A(f"v_cvt_pk_bf16_f32 v{FR[3]+q}, v{TY}, v{TY+1}")
        for T in range(3):
            c = "0" if s == 0 else vr(ACC[T], 4)
            A(f"v_mfma_f32_16x16x32_bf16 {vr(ACC[T],4)}, {vr(FR[T],4)}, {vr(FR[3],4)}, {c}")
    stamp(A, 2)
    for i in range(4):
        A(f"ds_add_f32 v28, v{ACC[0]+i} offset:{IMG + 4*(3-i)}")
    for i in range(4):
        A(f"ds_add_f32 v{29 if i < 2 else 30}, v{ACC[1]+i} offset:{IMG + 512*(i%2)}")
    A("s_mov_b32 exec_hi, 0x0000ffff")
    A(f"ds_add_f32 v31, v{ACC[2]} offset:{IMG + 96}")
    A("s_mov_b32 exec_hi, 0")
    for i in range(1, 4):
        A(f"ds_add_f32 v31, v{ACC[2]+i} offset:{IMG + 32*(3-i)}")
    A("s_mov_b32 exec_lo, 1")
    A("s_mov_b32 exec_hi, 1")
    A(f"v_sub_f32 v34, 0, v{ACC[1]}")
    A(f"ds_add_f32 v32, v34 offset:{IMG}")
    A("s_mov_b64 exec, -1")
    A("s_waitcnt lgkmcnt(0)")
    A("s_barrier")
    stamp(A, 3)
    A("v_cmp_gt_u32 vcc, 136, v0")
    A("s_and_saveexec_b64 s[10:11], vcc")
    A("s_cbranch_execz k1_kernel_done")
    A("v_lshlrev_b32 v10, 5, v0")
    A(f"ds_read_b128 v[36:39], v10 offset:{IMG}")
    A(f"ds_read_b128 v[40:43], v10 offset:{IMG+16}")
    A(f"s_mul_i32 s8, s5, {TAP_STRIDE}")
    A("v_mov_b32 v12, -1")
    A("v_mov_b32 v13, 0xffff")
    A("v_cmp_eq_u32 vcc, 115, v0")
    A("v_cndmask_b32 v12, v12, v13, vcc")
    A("s_waitcnt lgkmcnt(0)")
    for j in range(4):
        A(f"v_cvt_pk_bf16_f32 v{44+j}, v{36+2*j}, v{37+2*j}")
    A("v_and_b32 v47, v47, v12")
    A("buffer_store_dwordx4 v[44:47], v9, s[68:71], s8 offen")
    A("s_and_saveexec_b64 s[10:11], vcc")
    A("s_cbranch_execz k1_kernel_done")
    A("buffer_store_dword v43, off, s[68:71], s8 offset:2176")
    finish(A, 0)


def gen_k1(A):
    prologue(A, "k1_kernel", K1_NWG)
    A(f"s_cmp_lt_u32 s2, {K1_LN}")
    A("s_cbranch_scc1 k1_ln")
    A(f"s_cmp_lt_u32 s2, {K1_LN + K1_MOD}")
    A("s_cbranch_scc1 k1_mod")
    A(f"s_cmp_lt_u32 s2, {K1_LN + K1_MOD + K1_W2}")
    A("s_cbranch_scc1 k1_w2")
    k1_kgen(A)
    k1_ln(A)
    k1_mod(A)
    k1_w2(A)
    A.label("k1_kernel_done")
    finish(A, 0)
    A.label("k1_kernel_exit")
    A("s_endpgm")


def descriptor(name, vgpr, sgpr=96, agpr=0):
    acc = (vgpr + 3) // 4 * 4
    return f""".p2align 6
.amdhsa_kernel {name}
  .amdhsa_next_free_vgpr {acc + agpr if agpr else vgpr}
  .amdhsa_next_free_sgpr {sgpr}
  .amdhsa_accum_offset {acc}
  .amdhsa_group_segment_fixed_size 0
  .amdhsa_kernarg_size 128
  .amdhsa_user_sgpr_count 2
  .amdhsa_user_sgpr_kernarg_segment_ptr 1
  .amdhsa_system_sgpr_workgroup_id_x 1
.end_amdhsa_kernel
"""


def build(kernels):
    head = ["; adaLN + S4D long conv + SwiGLU FFN, gfx950. Generated by a hand-written generator script."]
    for (name, fn, nwg, block, lds, vg, ag) in kernels:
        head.append(f"; @launch kernel={name} grid=({nwg},1,1) block=({block},1,1) lds={lds}")
    A = Asm()
    A.raw('.amdgcn_target "amdgcn-amd-amdhsa--gfx950"')
    A.raw(".text")
    for (name, fn, nwg, block, lds, vg, ag) in kernels:
        A.window = []
        fn(A)
    out = "\n".join(head) + "\n" + A.text()
    out += '.section .rodata,"a"\n'
    for (name, fn, nwg, block, lds, vg, ag) in kernels:
        out += descriptor(name, vg, 102 if PROF else 96, ag)
    return out


KERNELS = [("k1_kernel", gen_k1, K1_NWG, 256, K1_LDS, 180, 0)]

if __name__ == "__main__":
    try:
        import gen2
        KERNELS = gen2.KERNELS
    except ImportError:
        pass
    n = int(sys.argv[2]) if len(sys.argv) > 2 else len(KERNELS)
    open(sys.argv[1], "w").write(build(KERNELS[:n]))
```

```python
from gen import *

N_LN, N_MOD, N_W2, N_CH = 64, 84, 56, 448
ST1_OFF = 0x10000
ST1_SZ = 2048 * 8
K12_NWG = N_LN + N_MOD + N_W2 + N_CH
B_CH, B_MOD, B_LN, B_W2 = 0, N_CH, N_CH + N_MOD, N_CH + N_MOD + N_LN
CNT_AB, CNT_B = 0, 4
FLAG_OFF = 128
SPIN_MAX = 1 << 22
SYNC_OFF, SYNC_SZ = 0x8000, 4096

HB = 0
S3B, S3P = 5184, 648
H2B, H2P = 10080, 320
S5B, S5P = 14320, 640
S7B, S7P = 18688, 520
S9B, S9P = 21792, 512
WB, WP = 24880, 8
Y0B = 26960
Y1B = Y0B + 8448
TAPB = Y1B + 7168
Y2B = S5B
Y3B = S5B + 6144
assert Y3B + 4096 <= WB
CH_LDS = TAPB + 2304
KG_PAR = 0
KG_PART = 4096
KG_IMG = 16384
K12_LDS = 46080
assert CH_LDS <= K12_LDS


def dbg_srd(A, sd):
    srd(A, sd, P_DBG, 0, 256)


def signal(A, sd, cnts, tag):
    A("s_waitcnt vmcnt(0)")
    A("s_barrier")
    A("s_cmp_lg_u32 s4, 0")
    A(f"s_cbranch_scc1 sig_{tag}")
    A("s_mov_b64 exec, 1")
    for i, (o, n) in enumerate(cnts):
        A(f"v_mov_b32 v{2+i}, 1")
        A(f"buffer_atomic_add v{2+i}, off, s[{sd}:{sd+3}], 0 offset:{o} sc0 sc1")
    A("s_waitcnt vmcnt(0)")
    for i, (o, n) in enumerate(cnts):
        A(f"v_readfirstlane_b32 s79, v{2+i}")
        A(f"s_cmp_lg_u32 s79, {n-1}")
        A(f"s_cbranch_scc1 sig_{tag}_{i}")
        A(f"v_mov_b32 v{2+i}, 1")
        A(f"buffer_store_dword v{2+i}, off, s[{sd}:{sd+3}], 0 offset:{FLAG_OFF + o} sc1")
        A.label(f"sig_{tag}_{i}")
    A("s_mov_b64 exec, -1")
    A.label(f"sig_{tag}")


def wait_cnt(A, sd, off, tag, sleep=8):
    A("s_cmp_lg_u32 s4, 0")
    A(f"s_cbranch_scc1 wt_{tag}_done")
    A(f"s_mov_b32 s78, {SPIN_MAX}")
    A.label(f"wt_{tag}_loop")
    A(f"buffer_load_dword v2, off, s[{sd}:{sd+3}], 0 offset:{FLAG_OFF + off} sc1")
    A("s_waitcnt vmcnt(0)")
    A("v_readfirstlane_b32 s79, v2")
    A("s_cmp_lg_u32 s79, 0")
    A(f"s_cbranch_scc1 wt_{tag}_done")
    A("s_sub_u32 s78, s78, 1")
    A("s_cmp_eq_u32 s78, 0")
    A(f"s_cbranch_scc1 wt_{tag}_done")
    A(f"s_sleep {sleep}")
    A(f"s_branch wt_{tag}_loop")
    A.label(f"wt_{tag}_done")
    A("s_barrier")


def r_ln(A):
    NR = 8
    RS = 912
    A.label("k12_ln")
    A("s_setprio 3")
    A(f"s_sub_u32 s13, s2, {B_LN}")
    A("s_lshl_b32 s5, s13, 5")
    srd(A, 48, P_U, 0, XT_SZ)
    srd(A, 52, P_WS, ST1_OFF, ST1_SZ)
    srd(A, 56, P_WS, XT_OFF, XT_SZ)
    dbg_srd(A, 72)
    A("s_lshl_b32 s12, s4, 3")
    A("s_add_u32 s12, s12, s5")
    A("s_mul_i32 s6, s12, 896")
    A("s_add_u32 s7, s6, 3584")
    A("v_lshlrev_b32 v3, 4, v1")
    A("v_mov_b32 v4, 0x7ffffff0")
    A("v_cmp_gt_u32 vcc, 56, v1")
    A("v_cndmask_b32 v4, v4, v3, vcc")
    XP, XU = 8, 40
    for r in range(NR):
        A(f"buffer_load_dwordx4 {vr(XP+4*r,4)}, v4, s[48:51], s{6 if r < 4 else 7} offen offset:{(r%4)*896}")
    A(f"s_mul_i32 s8, s4, {8*RS}")
    A("v_add_u32 v5, s8, v3")
    A("v_lshrrev_b32 v6, 4, v1")
    A("v_bfe_u32 v7, v1, 2, 2")
    A("v_lshl_add_u32 v7, v6, 3, v7")
    A(f"v_mul_u32_u24 v7, {RS}, v7")
    A("v_and_b32 v104, 3, v1")
    A("v_lshl_add_u32 v7, v104, 3, v7")
    A("s_lshl_b32 s9, s4, 5")
    A("v_add_u32 v7, s9, v7")
    A("v_and_b32 v104, 15, v1")
    A("s_lshl_b32 s9, s4, 4")
    A("v_add_u32 v104, s9, v104")
    A("v_lshlrev_b32 v104, 12, v104")
    A("v_lshl_add_u32 v6, v6, 4, v104")
    A("s_lshl_b32 s11, s5, 1")
    A(f"v_mov_b32 v158, {f32(1.0/448)}")
    A("s_mov_b32 exec_hi, 0x00ffffff")
    for r in range(NR):
        A(f"s_waitcnt vmcnt({NR-1-r})")
        A(f"ds_write_b128 v5, {vr(XP+4*r,4)} offset:{r*RS}")
    A("s_mov_b32 exec_hi, -1")
    stamp(A, 1)
    A("s_waitcnt lgkmcnt(0)")
    A("s_barrier")
    T = 104
    for i in range(7):
        for hf in range(2):
            A(f"ds_read_b64_tr_b16 {vr(T+4*i+2*hf,2)}, v7 offset:{hf*4*RS + i*128}")
    for i in range(7):
        A(f"s_waitcnt lgkmcnt({2*(6-i)})")
        A(f"buffer_store_dwordx4 {vr(T+4*i,4)}, v6, s[56:59], s11 offen sc1")
        if i < 6:
            A("s_add_u32 s11, s11, 0x40000")
    stamp(A, 2)
    S, M, R2 = 8, 132, 148
    for r in range(NR):
        for j in range(4):
            unpack2(A, XU+8*r+2*j, XU+8*r+2*j+1, XP+4*r+j)
    for r in range(NR):
        b = XU + 8*r
        A(f"v_pk_add_f32 {vr(M+2*r,2)}, {vr(b,2)}, {vr(b+2,2)}")
        A(f"v_pk_add_f32 {vr(16+2*r,2)}, {vr(b+4,2)}, {vr(b+6,2)}")
    for r in range(NR):
        A(f"v_pk_add_f32 {vr(M+2*r,2)}, {vr(M+2*r,2)}, {vr(16+2*r,2)}")
    for r in range(NR):
        A(f"v_add_f32 v{S+r}, v{M+2*r}, v{M+2*r+1}")
    dpp_reduce(A, [S+r for r in range(NR)])
    for r in range(NR):
        A(f"v_readlane_b32 s{60+r}, v{S+r}, 63")
    for r in range(NR):
        A(f"v_mul_f32 v{M+2*r}, s{60+r}, v158")
    for r in range(NR):
        b = XU + 8*r
        for j in range(4):
            A(f"v_pk_add_f32 {vr(b+2*j,2)}, {vr(b+2*j,2)}, {vr(M+2*r,2)} op_sel_hi:[1,0] neg_lo:[0,1] neg_hi:[0,1]")
    for r in range(NR):
        b = XU + 8*r
        A(f"v_pk_mul_f32 {vr(16+2*r,2)}, {vr(b,2)}, {vr(b,2)}")
    for j in range(1, 4):
        for r in range(NR):
            b = XU + 8*r
            A(f"v_pk_fma_f32 {vr(16+2*r,2)}, {vr(b+2*j,2)}, {vr(b+2*j,2)}, {vr(16+2*r,2)}")
    for r in range(NR):
        A(f"v_add_f32 v{S+r}, v{16+2*r}, v{17+2*r}")
    for r in range(NR):
        A(f"v_cndmask_b32 v{S+r}, 0, v{S+r}, vcc")
    dpp_reduce(A, [S+r for r in range(NR)])
    for r in range(NR):
        A(f"v_readlane_b32 s{60+r}, v{S+r}, 63")
    for r in range(NR):
        A(f"v_mul_f32 v{M+2*r+1}, s{60+r}, v158")
    for r in range(NR):
        round_bf16(A, M+2*r, M+2*r)
        round_bf16(A, M+2*r+1, M+2*r+1)
    for r in range(NR):
        A(f"v_add_f32 v{M+2*r+1}, {f32(1e-5)}, v{M+2*r+1}")
    for r in range(NR):
        round_bf16(A, M+2*r+1, M+2*r+1)
    for r in range(NR):
        A(f"v_sqrt_f32 v{M+2*r+1}, v{M+2*r+1}")
    for r in range(NR):
        round_bf16(A, M+2*r+1, M+2*r+1)
    for r in range(NR):
        A(f"v_rcp_f32 v{M+2*r+1}, v{M+2*r+1}")
    A("s_lshl_b32 s7, s12, 3")
    A("s_mov_b64 exec, 1")
    for q in range(4):
        A(f"buffer_store_dwordx4 {vr(M+4*q,4)}, off, s[52:55], s7 offset:{16*q} sc1")
    A("s_mov_b64 exec, -1")
    stamp(A, 3)
    signal(A, 72, [(CNT_AB, N_LN + N_MOD)], "lnA")
    stamp(A, 4)
    A("s_setprio 0")
    A("s_mov_b32 s5, s13")
    A("s_branch k12_wprep")


def r_mod(A):
    A.label("k12_mod")
    A("s_setprio 3")
    A(f"s_sub_u32 s5, s2, {B_MOD}")
    srd(A, 48, P_WMOD, 0, 448 * 5376)
    srd(A, 52, P_C, 0, 896)
    srd(A, 56, P_WS, MOD_OFF, MOD_SZ)
    dbg_srd(A, 72)
    A("v_lshrrev_b32 v3, 2, v0")
    A("v_and_b32 v4, 3, v0")
    A(f"s_mov_b32 s6, {7*5376}")
    A("v_mul_lo_u32 v5, v3, s6")
    A("v_lshl_add_u32 v5, v4, 4, v5")
    A("s_lshl_b32 s7, s5, 6")
    A("v_mul_u32_u24 v6, 14, v3")
    for j in range(7):
        A(f"buffer_load_ushort v{8+j}, v6, s[52:55], 0 offen offset:{2*j}")
    W = 16
    for s in range(7):
        A(f"buffer_load_dwordx4 {vr(W+4*s,4)}, v5, s[48:51], s7 offen")
        if s < 6:
            A("s_add_u32 s7, s7, 5376")
    A("s_waitcnt vmcnt(7)")
    stamp(A, 1)
    C = 72
    for j in range(7):
        A(f"v_lshlrev_b32 v{C+2*j}, 16, v{8+j}")
    NS = 7
    for s in range(NS):
        A(f"v_mul_f32 v{C+2*s+1}, {f32(-LOG2E)}, v{C+2*s}")
    for s in range(NS):
        A(f"v_exp_f32 v{C+2*s+1}, v{C+2*s+1}")
    for s in range(NS):
        A(f"v_add_f32 v{C+2*s+1}, 1.0, v{C+2*s+1}")
    for s in range(NS):
        A(f"v_rcp_f32 v{112+s}, v{C+2*s+1}")
    for s in range(NS):
        A(f"v_mul_f32 v{128+s}, v{C+2*s}, v{112+s}")
    for s in range(NS):
        A(f"v_fma_f32 v{C+2*s}, -v{128+s}, v{C+2*s+1}, v{C+2*s}")
    for s in range(NS):
        A(f"v_fma_f32 v{C+2*s}, v{C+2*s}, v{112+s}, v{128+s}")
    for s in range(NS):
        round_bf16(A, C+2*s, C+2*s)
    ACC, T = 104, 112
    for s in range(NS):
        A(f"s_waitcnt vmcnt({NS-1-s})")
        for j in range(4):
            unpack2(A, T+2*j, T+2*j+1, W+4*s+j)
        for j in range(4):
            if s == 0:
                A(f"v_pk_mul_f32 {vr(ACC+2*j,2)}, {vr(T+2*j,2)}, {vr(C+2*s,2)} op_sel_hi:[1,0]")
            else:
                A(f"v_pk_fma_f32 {vr(ACC+2*j,2)}, {vr(T+2*j,2)}, {vr(C+2*s,2)}, {vr(ACC+2*j,2)} op_sel_hi:[1,0,1]")
    stamp(A, 2)
    for mod in ("row_shr:4", "row_shr:8"):
        for j in range(8):
            A(f"v_add_f32_dpp v{ACC+j}, v{ACC+j}, v{ACC+j} {mod} row_mask:0xf bank_mask:0xf bound_ctrl:0")
    A("v_lshrrev_b32 v8, 4, v0")
    A("v_lshl_add_u32 v8, v8, 2, v4")
    A("v_lshlrev_b32 v8, 5, v8")
    A("s_mov_b32 exec_lo, 0xf000f000")
    A("s_mov_b32 exec_hi, 0xf000f000")
    for j in range(2):
        A(f"ds_write_b128 v8, {vr(ACC+4*j,4)} offset:{16*j}")
    A("s_mov_b64 exec, -1")
    A("s_waitcnt lgkmcnt(0)")
    A("s_barrier")
    A("s_cmp_lg_u32 s4, 0")
    A("s_cbranch_scc1 k12_mod_sig")
    A("v_and_b32 v9, 31, v1")
    A("v_lshlrev_b32 v10, 2, v9")
    A("v_lshrrev_b32 v11, 5, v1")
    A("v_lshl_add_u32 v11, v11, 10, v10")
    for p in range(8):
        A(f"ds_read_b32 v{16+p}, v11 offset:{128*p}")
    A("s_lshl_b32 s7, s5, 7")
    A("s_waitcnt lgkmcnt(0)")
    for st in (4, 2, 1):
        for j in range(st):
            A(f"v_add_f32 v{16+j}, v{16+j}, v{16+st+j}")
    A("v_mov_b32 v17, v16")
    A("v_permlane32_swap_b32 v16, v17")
    A("v_add_f32 v16, v16, v17")
    round_bf16(A, 8, 16)
    A("s_mov_b32 exec_hi, 0")
    A("buffer_store_dword v8, v10, s[56:59], s7 offen sc1")
    A("s_mov_b64 exec, -1")
    A.label("k12_mod_sig")
    stamp(A, 3)
    signal(A, 72, [(CNT_AB, N_LN + N_MOD), (CNT_B, N_MOD)], "mod")
    finish(A, 0)


def r_w2(A):
    A.label("k12_w2")
    A(f"s_sub_u32 s5, s2, {B_W2}")
    srd(A, 48, P_W2, 0, F * D * 2)
    srd(A, 52, P_WS, W2F_OFF, W2F_SZ)
    dbg_srd(A, 72)
    A("v_lshlrev_b32 v3, 4, v1")
    A("s_cmp_lg_u32 s5, 0")
    A("s_cbranch_scc1 k12_w2_nz")
    srd(A, 56, P_WS, SYNC_OFF, SYNC_SZ)
    for j in range(4):
        A(f"v_mov_b32 v{8+j}, 0")
    A("v_lshlrev_b32 v4, 4, v0")
    A("buffer_store_dwordx4 v[8:11], v4, s[56:59], 0 offen")
    A.label("k12_w2_nz")
    A("s_mul_i32 s6, s5, 28672")
    A("s_lshl_b32 s7, s4, 10")
    A("s_add_u32 s6, s6, s7")
    for i in range(7):
        A("s_mov_b32 m0, s7")
        A("buffer_load_dwordx4 v3, s[48:51], s6 offen lds")
        if i < 6:
            A("s_add_u32 s6, s6, 4096")
            A("s_add_u32 s7, s7, 4096")
    A("v_lshrrev_b32 v4, 4, v1")
    A("v_bfe_u32 v5, v1, 2, 2")
    A("v_lshl_add_u32 v4, v4, 3, v5")
    A("v_mul_u32_u24 v4, 896, v4")
    A("v_and_b32 v5, 3, v1")
    A("v_lshl_add_u32 v4, v5, 5, v4")
    A("s_lshl_b32 s8, s4, 3")
    A("v_add_u32 v4, s8, v4")
    A("s_lshl_b32 s9, s5, 2")
    A("s_add_u32 s9, s9, s4")
    A("s_lshl_b32 s9, s9, 10")
    A("s_waitcnt vmcnt(0)")
    A("s_barrier")
    T = 8
    for d4 in range(7):
        for hf in range(2):
            A(f"ds_read_b64_tr_b16 {vr(T+4*d4+2*hf,2)}, v4 offset:{hf*4*896 + d4*128}")
    for d4 in range(7):
        A(f"s_waitcnt lgkmcnt({2*(6-d4)})")
        A(f"buffer_store_dwordx4 {vr(T+4*d4,4)}, v3, s[52:55], s9 offen")
        if d4 < 6:
            A(f"s_add_u32 s9, s9, {56*4*1024}")
    stamp(A, 4)
    A("s_cmp_ge_u32 s5, 48")
    A("s_cbranch_scc1 k12_kernel_done")
    A("s_add_u32 s5, s5, 64")
    A("s_barrier")


def r_wprep(A):
    RS = 80
    RED = 448 * RS
    A.label("k12_wprep")
    A("s_lshr_b32 s6, s5, 1")
    A("s_and_b32 s5, s5, 1")
    A("s_cmp_eq_u32 s5, 0")
    A("s_cselect_b32 s48, s32, s34")
    A("s_cselect_b32 s49, s33, s35")
    A(f"s_mov_b32 s50, {D*F*2}")
    A("s_mov_b32 s51, 0x20000")
    srd(A, 52, P_WS, MOD_OFF, MOD_SZ)
    srd(A, 56, P_WS, W1F_OFF, W1F_SZ)
    srd(A, 60, P_WS, SB_OFF, SB_SZ)
    A("v_lshrrev_b32 v3, 2, v0")
    A("v_and_b32 v4, 3, v0")
    A(f"s_mov_b32 s7, {7*3584}")
    A("v_mul_lo_u32 v5, v3, s7")
    A("v_lshl_add_u32 v5, v4, 4, v5")
    A("v_mul_u32_u24 v6, 28, v3")
    A("s_lshl_b32 s8, s6, 6")
    W = 40
    for s in range(7):
        A(f"buffer_load_dwordx4 {vr(W+4*s,4)}, v5, s[48:51], s8 offen")
        if s < 6:
            A("s_add_u32 s8, s8, 3584")
    wait_cnt(A, 72, CNT_B, "wp", 12)
    A("s_mov_b32 s70, 5376")
    A("s_mov_b32 s71, 7168")
    for j in range(2):
        A(f"buffer_load_dwordx4 {vr(8+4*j,4)}, v6, s[52:55], s70 offen offset:{16*j} sc1")
    for j in range(2):
        A(f"buffer_load_dwordx4 {vr(16+4*j,4)}, v6, s[52:55], s71 offen offset:{16*j} sc1")
    A(f"v_mul_u32_u24 v102, {7*RS}, v3")
    A("v_lshl_add_u32 v102, v4, 4, v102")
    A("s_waitcnt vmcnt(0)")
    stamp(A, 5)
    C1, SBR = 72, 86
    for s in range(7):
        A(f"v_add_f32 v{C1+2*s}, 1.0, v{16+s}")
    for s in range(7):
        round_bf16(A, C1+2*s, C1+2*s)
    for s in range(7):
        A(f"v_mov_b32 v{SBR+2*s}, v{8+s}")
    AB, AS, T, T2 = 104, 112, 120, 128
    for s in range(7):
        for j in range(4):
            unpack2(A, T+2*j, T+2*j+1, W+4*s+j)
        for j in range(4):
            A(f"v_pk_mul_f32 {vr(T2+2*j,2)}, {vr(T+2*j,2)}, {vr(C1+2*s,2)} op_sel_hi:[1,0]")
        for j in range(4):
            if s == 0:
                A(f"v_pk_mul_f32 {vr(AB+2*j,2)}, {vr(T+2*j,2)}, {vr(SBR+2*s,2)} op_sel_hi:[1,0]")
            else:
                A(f"v_pk_fma_f32 {vr(AB+2*j,2)}, {vr(T+2*j,2)}, {vr(SBR+2*s,2)}, {vr(AB+2*j,2)} op_sel_hi:[1,0,1]")
        for j in range(4):
            A(f"v_cvt_pk_bf16_f32 v{W+4*s+j}, v{T2+2*j}, v{T2+2*j+1}")
        A(f"ds_write_b128 v102, {vr(W+4*s,4)} offset:{s*RS}")
        if s == 0:
            for j in range(4):
                unpack2(A, AS+2*j, AS+2*j+1, W+4*s+j)
        else:
            for j in range(4):
                unpack2(A, T+2*j, T+2*j+1, W+4*s+j)
            for j in range(4):
                A(f"v_pk_add_f32 {vr(AS+2*j,2)}, {vr(AS+2*j,2)}, {vr(T+2*j,2)}")
    for mod in ("row_shr:4", "row_shr:8"):
        for j in range(16):
            A(f"v_add_f32_dpp v{AB+j}, v{AB+j}, v{AB+j} {mod} row_mask:0xf bank_mask:0xf bound_ctrl:0")
    A("v_lshrrev_b32 v8, 4, v0")
    A("v_lshl_add_u32 v8, v8, 2, v4")
    A("v_lshlrev_b32 v8, 6, v8")
    A(f"v_add_u32 v8, {RED}, v8")
    A("s_mov_b32 exec_lo, 0xf000f000")
    A("s_mov_b32 exec_hi, 0xf000f000")
    for j in range(4):
        A(f"ds_write_b128 v8, {vr(AB+4*j,4)} offset:{16*j}")
    A("s_mov_b64 exec, -1")
    A("s_waitcnt lgkmcnt(0)")
    A("s_barrier")
    A("v_lshrrev_b32 v8, 2, v1")
    A(f"v_mul_u32_u24 v8, {RS}, v8")
    A("v_and_b32 v9, 3, v1")
    A("v_lshl_add_u32 v8, v9, 3, v8")
    A("s_and_b32 s9, s4, 1")
    A("s_lshr_b32 s10, s4, 1")
    A("s_lshl_b32 s11, s9, 5")
    A(f"s_mul_i32 s12, s10, {7*32*RS}")
    A("s_add_u32 s11, s11, s12")
    A("v_add_u32 v8, s11, v8")
    FR = 16
    for k in range(7):
        for hf in range(2):
            A(f"ds_read_b64_tr_b16 {vr(FR+4*k+2*hf,2)}, v8 offset:{(32*k + 16*hf)*RS}")
    A("v_and_b32 v10, 31, v1")
    A("v_lshrrev_b32 v11, 3, v10")
    A("v_lshlrev_b32 v11, 6, v11")
    A("v_and_b32 v12, 7, v10")
    A("v_lshl_add_u32 v11, v12, 2, v11")
    A("v_lshrrev_b32 v12, 5, v1")
    A("v_lshl_add_u32 v11, v12, 5, v11")
    A(f"v_add_u32 v11, {RED}, v11")
    for p in range(16):
        A(f"ds_read_b32 v{48+p}, v11 offset:{256*p}")
    A("s_lshl_b32 s13, s6, 1")
    A("s_add_u32 s13, s13, s9")
    A("s_mul_i32 s14, s13, 14")
    A("s_mul_i32 s15, s10, 7")
    A("s_add_u32 s14, s14, s15")
    A("s_lshl_b32 s14, s14, 1")
    A("s_add_u32 s14, s14, s5")
    A("s_lshl_b32 s14, s14, 10")
    A("v_lshlrev_b32 v13, 4, v1")
    A("s_waitcnt lgkmcnt(0)")
    for k in range(7):
        A(f"buffer_store_dwordx4 {vr(FR+4*k,4)}, v13, s[56:59], s14 offen offset:{2048*(k%2)}")
        if k % 2 == 1:
            A("s_add_u32 s14, s14, 4096")
    A("s_cmp_lg_u32 s4, 0")
    A("s_cbranch_scc1 k12_kernel_done")
    for st in (8, 4, 2, 1):
        for j in range(st):
            A(f"v_add_f32 v{48+j}, v{48+j}, v{48+st+j}")
    A("v_sub_u32 v12, 1, v12")
    A(f"v_mul_u32_u24 v12, {F*4}, v12")
    A("v_lshl_add_u32 v12, v10, 2, v12")
    A(f"s_mul_i32 s12, s5, {2*F*4}")
    A("s_lshl_b32 s13, s6, 7")
    A("s_add_u32 s12, s12, s13")
    A("buffer_store_dword v48, v12, s[60:63], s12 offen")
    finish(A, 0)


def r_chan(A):
    A.label("k12_chan")
    A("s_mov_b32 s5, s2")
    srd(A, 48, P_LAR, 0, D * N * 2)
    srd(A, 52, P_AIM, 0, D * N * 2)
    srd(A, 56, P_CR, 0, D * N * 2)
    srd(A, 60, P_CI, 0, D * N * 2)
    srd(A, 64, P_LDT, 0, D * 2)
    srd(A, 68, P_DSK, 0, D * 2)
    dbg_srd(A, 72)
    A("s_lshl_b32 s6, s5, 9")
    A("s_lshl_b32 s7, s5, 1")
    A("v_lshlrev_b32 v3, 1, v0")
    A("buffer_load_ushort v4, v3, s[48:51], s6 offen")
    A("buffer_load_ushort v5, v3, s[52:55], s6 offen")
    A("buffer_load_ushort v6, v3, s[56:59], s6 offen")
    A("buffer_load_ushort v7, v3, s[60:63], s6 offen")
    A("buffer_load_ushort v8, off, s[64:67], s7")
    A("buffer_load_ushort v160, off, s[68:71], s7")
    for j in range(4):
        A(f"v_mov_b32 v{12+j}, 0")
    A("v_lshlrev_b32 v9, 4, v0")
    A(f"ds_write_b128 v9, v[12:15] offset:{KG_IMG}")
    A("v_and_b32 v10, 63, v0")
    A("v_min_u32 v10, 32, v10")
    A("v_lshlrev_b32 v10, 4, v10")
    A(f"ds_write_b128 v10, v[12:15] offset:{KG_IMG+4096}")
    A("v_and_b32 v16, 15, v1")
    A("v_lshrrev_b32 v17, 4, v1")
    PT = [20, 22, 24, 26]
    A("v_and_b32 v18, 7, v16")
    A("v_lshrrev_b32 v19, 3, v16")
    A("v_lshl_add_u32 v20, v19, 7, v18")
    A("v_lshrrev_b32 v18, 2, v16")
    A("v_lshlrev_b32 v18, 7, v18")
    A("v_and_b32 v19, 3, v16")
    A("v_lshl_add_u32 v18, v19, 1, v18")
    A("v_add_u32 v18, 256, v18")
    A("v_lshrrev_b32 v19, 1, v16")
    A("v_lshlrev_b32 v19, 7, v19")
    A("v_and_b32 v21, 1, v16")
    A("v_lshl_add_u32 v19, v21, 2, v19")
    A("v_cmp_gt_u32 vcc, 8, v16")
    A("v_cndmask_b32 v22, v19, v18, vcc")
    A("v_lshlrev_b32 v18, 7, v16")
    A("v_add_u32 v18, 1024, v18")
    A("v_min_u32 v24, 2048, v18")
    A("v_lshlrev_b32 v26, 3, v16")
    for p in PT:
        A(f"v_cvt_f32_u32 v{p}, v{p}")
    A("v_and_b32 v18, 1, v17")
    A("v_lshrrev_b32 v19, 1, v17")
    A("v_lshlrev_b32 v28, 3, v16")
    A("v_lshl_add_u32 v28, v18, 2, v28")
    A("v_lshl_add_u32 v28, v19, 7, v28")
    A("v_sub_u32 v28, 284, v28")
    A("v_lshlrev_b32 v28, 2, v28")
    A("v_lshlrev_b32 v18, 5, v17")
    A("v_lshl_add_u32 v19, v16, 1, v18")
    A("v_sub_u32 v19, 415, v19")
    A("v_add_u32 v21, v16, v18")
    A("v_sub_u32 v21, 735, v21")
    A("v_cmp_gt_u32 vcc, 2, v17")
    A("v_cndmask_b32 v29, v21, v19, vcc")
    A("v_mov_b32 v19, 16")
    A("v_cndmask_b32 v30, v19, 1, vcc")
    A("v_sub_u32 v30, v29, v30")
    A("v_lshlrev_b32 v29, 2, v29")
    A("v_lshlrev_b32 v30, 2, v30")
    A("v_and_b32 v19, 1, v16")
    A("v_lshlrev_b32 v19, 7, v19")
    A("v_lshrrev_b32 v21, 1, v16")
    A("v_add_u32 v21, v21, v18")
    A("v_sub_u32 v31, v19, v21")
    A("v_add_u32 v31, 903, v31")
    A("v_lshlrev_b32 v31, 2, v31")
    A("v_lshlrev_b32 v33, 6, v17")
    A("s_lshl_b32 s8, s4, 10")
    A("v_add_u32 v33, s8, v33")
    A("s_waitcnt vmcnt(0)")
    for r in (4, 5, 6, 7, 8):
        A(f"v_lshlrev_b32 v{r}, 16, v{r}")
    A(f"v_mul_f32 v8, {f32(LOG2E)}, v8")
    A(f"v_mul_f32 v4, {f32(LOG2E)}, v4")
    A("v_exp_f32 v8, v8")
    A("v_exp_f32 v4, v4")
    round_bf16(A, 8, 8)
    round_bf16(A, 4, 4)
    A("v_mul_f32 v12, v4, v8")
    A(f"v_mul_f32 v12, {f32(-LOG2E)}, v12")
    A("v_mul_f32 v13, v5, v8")
    A(f"v_mul_f32 v13, {f32(1.0/(2*math.pi))}, v13")
    A("v_mul_f32 v14, v6, v8")
    A("v_add_f32 v14, v14, v14")
    A("v_mul_f32 v15, v7, v8")
    A("v_add_f32 v15, v15, v15")
    A(f"ds_write_b128 v9, v[12:15] offset:{KG_PAR}")
    A("s_waitcnt lgkmcnt(0)")
    A("s_barrier")
    stamp(A, 1)
    PB = [36, 52]
    FR = [68, 72, 76, 80]
    TA = [84, 86, 88, 90]
    TB = [92, 94, 96, 98]
    TY = 100
    ACC = [104, 108, 112]

    def rd(s):
        for q in range(4):
            A(f"ds_read_b128 {vr(PB[s%2]+4*q,4)}, v33 offset:{KG_PAR + (16*s+q)*16}")
    rd(0)
    for s in range(4):
        if s < 3:
            rd(s + 1)
            A("s_waitcnt lgkmcnt(4)")
        else:
            A("s_waitcnt lgkmcnt(0)")
        for q in range(4):
            P = PB[s % 2] + 4*q
            for T in range(4):
                A(f"v_pk_mul_f32 {vr(TA[T],2)}, {vr(P,2)}, {vr(PT[T],2)} op_sel_hi:[1,0]")
            for T in range(4):
                A(f"v_fract_f32 v{TA[T]+1}, v{TA[T]+1}")
            for T in range(4):
                A(f"v_exp_f32 v{TA[T]}, v{TA[T]}")
            for T in range(4):
                A(f"v_cos_f32 v{TB[T]}, v{TA[T]+1}")
                A(f"v_sin_f32 v{TB[T]+1}, v{TA[T]+1}")
            for T in (3, 0, 1, 2):
                A(f"v_pk_mul_f32 {vr(TB[T],2)}, {vr(TB[T],2)}, {vr(TA[T],2)} op_sel_hi:[1,0]")
            A(f"v_pk_mul_f32 {vr(TY,2)}, {vr(P+2,2)}, {vr(TB[3],2)} op_sel_hi:[1,0] neg_hi:[1,0]")
            for T in range(3):
                A(f"v_cvt_pk_bf16_f32 v{FR[T]+q}, v{TB[T]}, v{TB[T]+1}")
            A(f"v_fma_f32 v{TY}, -v{TB[3]+1}, v{P+3}, v{TY}")
            A(f"v_fma_f32 v{TY+1}, -v{TB[3]+1}, v{P+2}, v{TY+1}")
            A(f"v_cvt_pk_bf16_f32 v{FR[3]+q}, v{TY}, v{TY+1}")
        for T in range(3):
            c = "0" if s == 0 else vr(ACC[T], 4)
            A(f"v_mfma_f32_16x16x32_bf16 {vr(ACC[T],4)}, {vr(FR[T],4)}, {vr(FR[3],4)}, {c}")
    stamp(A, 2)
    A("v_lshlrev_b32 v34, 4, v1")
    A("v_add_u32 v35, s8, v34")
    for T in range(3):
        A(f"ds_write_b128 v35, {vr(ACC[T],4)} offset:{KG_PART + 4096*T}")
    A("s_waitcnt lgkmcnt(0)")
    A("s_barrier")
    A("s_cmp_eq_u32 s4, 3")
    A("s_cbranch_scc1 k12c_sc_done")
    A("s_lshl_b32 s9, s4, 12")
    A("v_add_u32 v35, s9, v34")
    for w in range(4):
        A(f"ds_read_b128 {vr(36+4*w,4)}, v35 offset:{KG_PART + 1024*w}")
    A("s_waitcnt lgkmcnt(0)")
    for p in range(2):
        A(f"v_pk_add_f32 {vr(36+2*p,2)}, {vr(36+2*p,2)}, {vr(40+2*p,2)}")
        A(f"v_pk_add_f32 {vr(44+2*p,2)}, {vr(44+2*p,2)}, {vr(48+2*p,2)}")
    for p in range(2):
        A(f"v_pk_add_f32 {vr(36+2*p,2)}, {vr(36+2*p,2)}, {vr(44+2*p,2)}")
    A("s_cmp_eq_u32 s4, 1")
    A("s_cbranch_scc1 k12c_sc1")
    A("s_cmp_eq_u32 s4, 2")
    A("s_cbranch_scc1 k12c_sc2")
    for i in range(4):
        A(f"ds_write_b32 v28, v{36+i} offset:{KG_IMG + 4*(3-i)}")
    A("s_branch k12c_sc_done")
    A.label("k12c_sc1")
    for i in range(4):
        A(f"ds_write_b32 v{29 if i < 2 else 30}, v{36+i} offset:{KG_IMG + 512*(i%2)}")
    A("s_branch k12c_sc_done")
    A.label("k12c_sc2")
    A("s_mov_b32 exec_hi, 0x0000ffff")
    A(f"ds_write_b32 v31, v36 offset:{KG_IMG + 96}")
    A("s_mov_b32 exec_hi, 0")
    for i in range(1, 4):
        A(f"ds_write_b32 v31, v{36+i} offset:{KG_IMG + 32*(3-i)}")
    A("s_mov_b64 exec, -1")
    A.label("k12c_sc_done")
    A("s_waitcnt lgkmcnt(0)")
    A("s_barrier")
    A("v_lshlrev_b32 v10, 5, v0")
    A(f"v_mov_b32 v11, {4608}")
    A(f"v_mov_b32 v12, {415*4}")
    A("v_cmp_eq_u32 vcc, 4, v0")
    A("v_cndmask_b32 v11, v11, v12, vcc")
    A(f"v_mov_b32 v12, {671*4}")
    A("v_cmp_eq_u32 vcc, 60, v0")
    A("v_cndmask_b32 v11, v11, v12, vcc")
    A("v_mov_b32 v12, -1")
    A("v_mov_b32 v13, 0xffff")
    A("v_cmp_eq_u32 s[10:11], 115, v0" if False else "v_mov_b32 v14, 115")
    A("v_cmp_eq_u32 s[10:11], v14, v0")
    A("v_cndmask_b32 v12, v12, v13, s[10:11]")
    A("v_cmp_gt_u32 vcc, 136, v0")
    A("s_and_saveexec_b64 s[12:13], vcc")
    A("s_cbranch_execz k12c_cv_done")
    A(f"ds_read_b128 v[36:39], v10 offset:{KG_IMG}")
    A(f"ds_read_b128 v[40:43], v10 offset:{KG_IMG+16}")
    A(f"ds_read_b32 v44, v11 offset:{KG_IMG}")
    A("s_waitcnt lgkmcnt(0)")
    A("v_sub_f32 v36, v36, v44")
    for j in range(4):
        A(f"v_cvt_pk_bf16_f32 v{44+j}, v{36+2*j}, v{37+2*j}")
    A("v_and_b32 v47, v47, v12")
    A(f"ds_write_b128 v9, v[44:47] offset:{TAPB}")
    A("s_and_b64 exec, exec, s[10:11]")
    A("s_cbranch_execz k12c_cv_done")
    A(f"v_mov_b32 v14, {TAPB + 2176}")
    A("ds_write_b32 v14, v43")
    A.label("k12c_cv_done")
    A("s_mov_b64 exec, -1")
    A("s_waitcnt lgkmcnt(0)")
    srd(A, 48, P_WS, ST1_OFF, ST1_SZ)
    srd(A, 52, P_WS, XT_OFF, XT_SZ)
    srd(A, 56, P_WS, MOD_OFF, MOD_SZ)
    srd(A, 60, P_WS, X2T_OFF, XT_SZ)
    A("s_barrier")
    TF, DF, ACC = 104, 32, 64
    A("v_lshlrev_b32 v6, 4, v0")
    A("v_and_b32 v3, 15, v1")
    A("v_lshrrev_b32 v4, 4, v1")
    A("v_lshlrev_b32 v5, 3, v4")
    A("v_sub_u32 v5, v5, v3")
    A("v_lshlrev_b32 v5, 1, v5")
    A(f"v_add_u32 v5, {TAPB + 30}, v5")
    A("s_cmp_eq_u32 s4, 2")
    A("s_cbranch_scc1 k12c_tf2")
    A("s_cmp_eq_u32 s4, 3")
    A("s_cbranch_scc1 k12c_tf3")
    for k in range(9):
        A(f"ds_read_b128 {vr(TF+4*k,4)}, v5 offset:{64*k}")
    A("s_branch k12c_tfx")
    A.label("k12c_tf2")
    for q in range(2):
        for k in range(3):
            A(f"ds_read_b128 {vr(TF+4*(3*q+k),4)}, v5 offset:{640 + 256*q + 64*k}")
    A("s_branch k12c_tfx")
    A.label("k12c_tf3")
    for q in range(4):
        for k in range(3):
            A(f"ds_read_b128 {vr(TF+4*(3*q+k),4)}, v5 offset:{640 + 256*(q+2) + 64*k}")
    A.label("k12c_tfx")
    for j in range(4):
        A(f"v_mov_b32 v{12+j}, 0")
    for (B, n) in ((HB, 51), (S3B, 80), (H2B, 39), (S5B, 79), (S7B, 64), (S9B, 63)):
        A(f"v_cmp_gt_u32 vcc, {n}, v0")
        A("s_and_saveexec_b64 s[12:13], vcc")
        A(f"s_cbranch_execz k12c_z_{B}")
        A(f"ds_write_b128 v6, v[12:15] offset:{B}")
        A.label(f"k12c_z_{B}")
        A("s_mov_b64 exec, s[12:13]")
    A("v_lshrrev_b32 v7, 4, v0")
    A("v_lshl_add_u32 v7, v7, 4, v6")
    A("v_add_u32 v16, 47, v0")
    A("v_lshrrev_b32 v16, 4, v16")
    A("v_lshl_add_u32 v16, v16, 4, v6")
    A("v_add_u32 v17, 46, v0")
    A("v_lshrrev_b32 v17, 4, v17")
    A("v_lshl_add_u32 v17, v17, 4, v6")
    A("v_lshlrev_b32 v5, 6, v0")
    A("s_lshl_b32 s9, s5, 12")
    A("s_lshl_b32 s6, s5, 2")
    A("s_waitcnt lgkmcnt(0)")
    stamp(A, 3)
    wait_cnt(A, 72, CNT_AB, "chAB", 6)
    stamp(A, 4)
    A("buffer_load_dwordx4 v[152:155], v6, s[52:55], s9 offen sc1")
    for j in range(4):
        A(f"buffer_load_dwordx4 {vr(40+4*j,4)}, v5, s[48:51], 0 offen offset:{16*j} sc1")
    A("buffer_load_dword v20, off, s[56:59], s6 sc1")
    A("buffer_load_dword v18, off, s[56:59], s6 offset:1792 sc1")
    A("buffer_load_dword v162, off, s[56:59], s6 offset:3584 sc1")
    HF = 24
    A("s_waitcnt vmcnt(3)")
    for j in range(4):
        unpack2(A, HF+2*j, HF+2*j+1, 152+j)
    for j in range(8):
        A(f"v_sub_f32 v{HF+j}, v{HF+j}, v{40+2*j}")
    for j in range(4):
        A(f"v_cvt_pk_bf16_f32 v{8+j}, v{HF+2*j}, v{HF+2*j+1}")
    for j in range(4):
        unpack2(A, HF+2*j, HF+2*j+1, 8+j)
    for j in range(8):
        A(f"v_mul_f32 v{HF+j}, v{HF+j}, v{41+2*j}")
    for j in range(4):
        A(f"v_cvt_pk_bf16_f32 v{8+j}, v{HF+2*j}, v{HF+2*j+1}")
    for j in range(4):
        unpack2(A, HF+2*j, HF+2*j+1, 8+j)
    A("s_waitcnt vmcnt(0)")
    A("v_add_f32 v18, 1.0, v18")
    round_bf16(A, 18, 18)
    for j in range(4):
        A(f"v_pk_mul_f32 {vr(HF+2*j,2)}, {vr(HF+2*j,2)}, v[18:19] op_sel_hi:[1,0]")
    for j in range(4):
        A(f"v_cvt_pk_bf16_f32 v{8+j}, v{HF+2*j}, v{HF+2*j+1}")
    for j in range(4):
        unpack2(A, HF+2*j, HF+2*j+1, 8+j)
    for j in range(4):
        A(f"v_pk_add_f32 {vr(HF+2*j,2)}, {vr(HF+2*j,2)}, v[20:21] op_sel_hi:[1,0]")
    for j in range(4):
        A(f"v_cvt_pk_bf16_f32 v{8+j}, v{HF+2*j}, v{HF+2*j+1}")
    A(f"ds_write_b128 v7, v[8:11] offset:{HB + 816}")
    for j in range(4):
        unpack2(A, HF+2*j, HF+2*j+1, 8+j)
    A("s_waitcnt lgkmcnt(0)")
    A("s_barrier")
    stamp(A, 5)
    A(f"ds_read_b64 v[8:9], v17 offset:{HB + 744}")
    A(f"ds_read_b128 v[10:13], v16 offset:{HB + 752}")
    A(f"ds_read_b64 v[14:15], v7 offset:{HB + 816}")
    E, Q, S4, S3, S5, S7, S9 = 32, 48, 62, 74, 84, 48, 32
    A("s_waitcnt lgkmcnt(0)")
    for j in range(8):
        unpack2(A, E+2*j, E+2*j+1, 8+j)
    for j in range(4):
        A(f"v_mov_b32 v{96+j}, v{9+j}")
    for k in range(14):
        A(f"v_add_f32 v{Q+k}, v{E+k}, v{E+k+1}")
    for m in range(10):
        A(f"v_add_f32 v{S3+m}, v{Q+m+3}, v{E+m+5}")
    for k in range(0, 12, 2):
        A(f"v_pk_add_f32 {vr(S4+k,2)}, {vr(Q+k,2)}, {vr(Q+k+2,2)}")
    for m in range(0, 10, 2):
        A(f"v_pk_add_f32 {vr(S5+m,2)}, {vr(S4+m+2,2)}, {vr(E+m+6,2)}")
    for m in range(-1, 8):
        A(f"v_add_f32 v{S7+m+1}, v{S4+m+1}, v{S3+m+2}")
    for m in range(0, 8, 2):
        A(f"v_pk_add_f32 {vr(S9+m,2)}, {vr(S4+m,2)}, {vr(S5+m+2,2)}")
    outs = ((S3, 8), (S5, 12), (S7+1, 40), (S9, 44), (S7, 60))
    for (src, t) in outs:
        for j in range(4):
            A(f"v_cvt_pk_bf16_f32 v{t+j}, v{src+2*j}, v{src+2*j+1}")
    groups = ((225, ((8, S3B, S3P), (96, H2B, H2P))), (193, ((12, S5B, S5P),)),
              (129, ((40, S7B, S7P), (44, S9B, S9P), (60, WB, WP))))
    for gi, (lim, items) in enumerate(groups):
        A(f"v_cmp_gt_u32 vcc, {lim}, v0")
        A("s_and_saveexec_b64 s[12:13], vcc")
        A(f"s_cbranch_execz k12c_w{gi}")
        for (t, B, P) in items:
            A(f"ds_write_b128 v6, {vr(t,4)} offset:{B + 2*P - 16}")
        A.label(f"k12c_w{gi}")
        A("s_mov_b64 exec, s[12:13]")
    A("s_waitcnt lgkmcnt(0)")
    A("v_bfe_u32 v8, v1, 2, 2")
    A("v_and_b32 v9, 3, v1")
    A("v_lshl_add_u32 v10, v4, 3, v8")
    A("s_cmp_eq_u32 s4, 2")
    A("s_cbranch_scc1 k12c_seg1")
    A("s_cmp_eq_u32 s4, 3")
    A("s_cbranch_scc1 k12c_seg23")
    A("s_lshl_b32 s7, s4, 4")
    A("v_lshlrev_b32 v11, 3, v4")
    A("v_add_u32 v11, s7, v11")
    A("v_mul_u32_u24 v12, 272, v3")
    A("v_lshl_add_u32 v12, v11, 1, v12")
    A("v_cmp_le_u32 vcc, 16, v11")
    A("v_add_u32 v13, 16, v12")
    A("v_cndmask_b32 v13, v12, v13, vcc")
    NS = 12

    def rd0(s):
        z = 32*s + 112
        A(f"ds_read_b128 {vr(DF+4*(s%8),4)}, v{13 if s % 4 == 0 else 12} offset:{HB + 2*z + 16*(z >> 7)}")
    PF = 4
    A("s_barrier")
    for s in range(PF):
        rd0(s)
    first = [True] * 4
    for s in range(NS):
        if s + PF < NS:
            rd0(s + PF)
            A(f"s_waitcnt lgkmcnt({PF})")
        else:
            A(f"s_waitcnt lgkmcnt({NS - 1 - s})")
        for a in range(4):
            k = s - a
            if 0 <= k <= 8:
                c = "0" if first[a] else vr(ACC+4*a, 4)
                first[a] = False
                A(f"v_mfma_f32_16x16x32_bf16 {vr(ACC+4*a,4)}, {vr(TF+4*k,4)}, {vr(DF+4*(s%8),4)}, {c}")
    A("v_mul_u32_u24 v12, 528, v3")
    A("v_lshl_add_u32 v12, v4, 4, v12")
    A("s_lshl_b32 s7, s4, 6")
    A("v_add_u32 v12, s7, v12")
    for a in range(4):
        A(f"ds_write_b128 v12, {vr(ACC+4*a,4)} offset:{Y0B + 128*a}")
    A("s_branch k12c_epi")

    def seg_tr(ntile, phis, seqs, vbase, ustride, accbase, tfbase):
        items = [(phi, q) for phi in phis for q in range(len(seqs))]
        first = [True] * ntile

        def rd(n):
            phi, q = items[n]
            for hf in range(2):
                imm = ustride * (16*phi + 4*hf - 80) + seqs[q]
                assert 0 <= imm < 65536
                A(f"ds_read_b64_tr_b16 {vr(DF+4*(n%8)+2*hf,2)}, v{vbase} offset:{imm}")
        PFN = 4
        for n in range(min(PFN, len(items))):
            rd(n)
        for n in range(len(items)):
            if n + PFN < len(items):
                rd(n + PFN)
                A(f"s_waitcnt lgkmcnt({2*PFN})")
            else:
                A(f"s_waitcnt lgkmcnt({2*(len(items)-1-n)})")
            phi, q = items[n]
            for k in range(3):
                tau = phi - 2*k
                if 0 <= tau < ntile:
                    c = "0" if first[tau] else vr(accbase+4*tau, 4)
                    first[tau] = False
                    A(f"v_mfma_f32_16x16x32_bf16 {vr(accbase+4*tau,4)}, {vr(DF+4*(n%8),4)}, {vr(tfbase+4*(3*q+k),4)}, {c}")
        assert not any(first)

    A.label("k12c_seg1")
    A("v_mul_u32_u24 v12, 112, v9")
    A("v_add_u32 v12, v12, v10")
    A("v_lshlrev_b32 v12, 3, v12")
    A("s_barrier")
    seg_tr(7, range(11), [S3B + 2*S3P, H2B + 2*H2P], 12, 8, ACC, TF)
    A("v_mul_u32_u24 v12, 112, v4")
    A("v_add_u32 v12, v12, v3")
    A("v_lshlrev_b32 v12, 4, v12")
    for t in range(7):
        A(f"ds_write_b128 v12, {vr(ACC+4*t,4)} offset:{Y1B + 256*t}")
    A("s_branch k12c_epi")

    A.label("k12c_seg23")
    A("v_lshrrev_b32 v12, 1, v9")
    A("v_mul_u32_u24 v12, 96, v12")
    A("v_add_u32 v12, v12, v10")
    A("v_lshlrev_b32 v12, 4, v12")
    A("v_and_b32 v13, 1, v9")
    A("v_lshl_add_u32 v12, v13, 3, v12")
    A("v_lshlrev_b32 v13, 5, v10")
    A("v_lshl_add_u32 v13, v9, 3, v13")
    A("s_barrier")
    seg_tr(6, range(10), [S5B + 2*S5P, S3B + 2*S3P - 8], 12, 16, ACC, TF)
    seg_tr(4, range(3, 8), [S9B + 2*S9P, S7B + 2*S7P - 16], 13, 32, ACC + 24, TF + 24)
    A("v_lshrrev_b32 v12, 1, v4")
    A("v_mul_u32_u24 v12, 96, v12")
    A("v_add_u32 v12, v12, v3")
    A("v_lshlrev_b32 v12, 5, v12")
    A("v_and_b32 v13, 1, v4")
    A("v_lshl_add_u32 v12, v13, 4, v12")
    for t in range(6):
        A(f"ds_write_b128 v12, {vr(ACC+4*t,4)} offset:{Y2B + 512*t}")
    A("v_lshlrev_b32 v13, 6, v3")
    A("v_lshl_add_u32 v13, v4, 4, v13")
    for t in range(4):
        A(f"ds_write_b128 v13, {vr(ACC+24+4*t,4)} offset:{Y3B + 1024*t}")
    A.label("k12c_epi")
    stamp(A, 6)
    A("v_lshlrev_b32 v12, 5, v0")
    A("v_lshrrev_b32 v13, 4, v0")
    A("v_lshl_add_u32 v13, v13, 4, v12")
    A(f"v_add_u32 v13, {Y0B}, v13")
    A(f"v_add_u32 v14, {Y1B - 1024}, v12")
    A("v_cmp_le_u32 vcc, 32, v0")
    A("v_cndmask_b32 v14, 0, v14, vcc")
    A(f"v_add_u32 v15, {Y2B - 2048}, v12")
    A("v_cmp_le_u32 vcc, 64, v0")
    A("v_cndmask_b32 v15, 0, v15, vcc")
    A(f"v_add_u32 v16, {Y3B - 4096}, v12")
    A("v_cmp_le_u32 vcc, 128, v0")
    A("v_cndmask_b32 v16, 0, v16, vcc")
    A(f"v_add_u32 v17, {WB + 2*WP - 2048}, v6")
    A("v_cmp_le_u32 vcc, 127, v0")
    A("v_cndmask_b32 v17, 0, v17, vcc")
    A("s_waitcnt lgkmcnt(0)")
    A("s_barrier")
    for n, a in enumerate((13, 14, 15, 16)):
        A(f"ds_read_b128 {vr(32+8*n,4)}, v{a}")
        A(f"ds_read_b128 {vr(36+8*n,4)}, v{a} offset:16")
    A("ds_read_b128 v[64:67], v17")
    A(f"v_mov_b32 v18, {TAPB + 2176}")
    A("ds_read_b32 v18, v18")
    A("v_lshlrev_b32 v20, 16, v160")
    for j in range(4):
        A(f"v_pk_mul_f32 {vr(80+2*j,2)}, {vr(HF+2*j,2)}, v[20:21] op_sel_hi:[1,0]")
    for j in range(4):
        A(f"v_cvt_pk_bf16_f32 v{88+j}, v{80+2*j}, v{81+2*j}")
    for j in range(4):
        unpack2(A, 80+2*j, 81+2*j, 88+j)
    A("s_waitcnt lgkmcnt(6)")
    for j in range(4):
        A(f"v_pk_add_f32 {vr(32+2*j,2)}, {vr(32+2*j,2)}, {vr(40+2*j,2)}")
    A("s_waitcnt lgkmcnt(2)")
    for j in range(4):
        A(f"v_pk_add_f32 {vr(48+2*j,2)}, {vr(48+2*j,2)}, {vr(56+2*j,2)}")
    A("s_waitcnt lgkmcnt(0)")
    for j in range(4):
        unpack2(A, 68+2*j, 69+2*j, 64+j)
    for j in range(4):
        A(f"v_pk_add_f32 {vr(32+2*j,2)}, {vr(32+2*j,2)}, {vr(48+2*j,2)}")
    for j in range(4):
        A(f"v_pk_fma_f32 {vr(32+2*j,2)}, {vr(68+2*j,2)}, v[18:19], {vr(32+2*j,2)} op_sel_hi:[1,0,1]")

    def rnd(base):
        for j in range(4):
            A(f"v_cvt_pk_bf16_f32 v{88+j}, v{base+2*j}, v{base+2*j+1}")
        for j in range(4):
            unpack2(A, base+2*j, base+2*j+1, 88+j)
    rnd(32)
    for j in range(4):
        A(f"v_pk_add_f32 {vr(32+2*j,2)}, {vr(32+2*j,2)}, {vr(80+2*j,2)}")
    rnd(32)
    for j in range(4):
        A(f"v_pk_mul_f32 {vr(32+2*j,2)}, {vr(32+2*j,2)}, v[162:163] op_sel_hi:[1,0]")
    rnd(32)
    for j in range(4):
        unpack2(A, 92+2*j, 93+2*j, 152+j)
    for j in range(4):
        A(f"v_pk_add_f32 {vr(32+2*j,2)}, {vr(32+2*j,2)}, {vr(92+2*j,2)}")
    for j in range(4):
        A(f"v_cvt_pk_bf16_f32 v{88+j}, v{32+2*j}, v{33+2*j}")
    A("buffer_store_dwordx4 v[88:91], v6, s[60:63], s9 offen")
    finish(A, 0)


def gen_k12(A):
    prologue(A, "k12_kernel", K12_NWG)
    A(f"s_cmp_ge_u32 s2, {B_W2}")
    A("s_cbranch_scc1 k12_w2")
    A(f"s_cmp_ge_u32 s2, {B_LN}")
    A("s_cbranch_scc1 k12_ln")
    A(f"s_cmp_ge_u32 s2, {B_MOD}")
    A("s_cbranch_scc1 k12_mod")
    r_chan(A)
    r_ln(A)
    r_mod(A)
    r_w2(A)
    r_wprep(A)
    A.label("k12_kernel_done")
    finish(A, 0)
    A.label("k12_kernel_exit")
    A("s_endpgm")


K12 = ("k12_kernel", gen_k12, K12_NWG, 256, K12_LDS, 164, 0)
```

```python
from gen import *

K2_WP, K2_CONV = 56, 448
K2_NWG = K2_WP + K2_CONV
HB = 0
S3B, S3P = 5184, 648
H2B, H2P = 10560, 320
S5B, S5P = 15280, 640
S7B, S7P = 20640, 520
S9B, S9P = 25760, 512
WB, WP = 30864, 8
Y0B = 34960
Y1B = Y0B + 8448
Y2B = Y1B + 7168
Y3B = Y2B + 6144
CONV_LDS = Y3B + 4096
K2_LDS = 72192
assert CONV_LDS <= K2_LDS


def k2_conv(A):
    A.label("k2_conv")
    A(f"s_sub_u32 s5, s2, {K2_WP}")
    srd(A, 48, P_WS, XNT_OFF, XT_SZ)
    srd(A, 52, P_WS, XT_OFF, XT_SZ)
    srd(A, 56, P_WS, TAPS_OFF, TAPS_SZ)
    srd(A, 60, P_WS, X2T_OFF, XT_SZ)
    A("s_lshl_b32 s6, s5, 2")
    A("s_load_dword s64, s[46:47], s6")
    A("s_add_u32 s7, s6, 1792")
    A("s_load_dword s65, s[46:47], s7")
    A("s_add_u32 s7, s6, 3584")
    A("s_load_dword s66, s[46:47], s7")
    A("s_lshl_b32 s7, s5, 1")
    A("s_and_b32 s7, s7, 0xfffffffc")
    A("s_load_dword s67, s[28:29], s7")
    A(f"s_mul_i32 s8, s5, {TAP_STRIDE}")
    A(f"s_add_u32 s7, s8, {TAPS_OFF + 2176}")
    A("s_load_dword s68, s[46:47], s7")
    A("v_and_b32 v3, 15, v1")
    A("v_lshrrev_b32 v4, 4, v1")
    A("v_lshlrev_b32 v5, 3, v4")
    A("v_sub_u32 v5, v5, v3")
    A("v_add_u32 v5, 15, v5")
    A("v_lshlrev_b32 v5, 1, v5")
    TF = 128
    A("s_cmp_eq_u32 s4, 2")
    A("s_cbranch_scc1 k2c_ld2")
    A("s_cmp_eq_u32 s4, 3")
    A("s_cbranch_scc1 k2c_ld3")
    for k in range(9):
        A(f"buffer_load_dwordx4 {vr(TF+4*k,4)}, v5, s[56:59], s8 offen offset:{64*k}")
    A("s_branch k2c_ldx")
    A.label("k2c_ld2")
    for q in range(2):
        for k in range(3):
            A(f"buffer_load_dwordx4 {vr(TF+4*(3*q+k),4)}, v5, s[56:59], s8 offen offset:{640 + 256*q + 64*k}")
    A("s_branch k2c_ldx")
    A.label("k2c_ld3")
    for q in range(4):
        for k in range(3):
            A(f"buffer_load_dwordx4 {vr(TF+4*(3*q+k),4)}, v5, s[56:59], s8 offen offset:{640 + 256*(q+2) + 64*k}")
    A.label("k2c_ldx")
    A("v_lshlrev_b32 v6, 4, v0")
    A("s_lshl_b32 s9, s5, 12")
    A("buffer_load_dwordx4 v[8:11], v6, s[48:51], s9 offen")
    A("buffer_load_dwordx4 v[240:243], v6, s[52:55], s9 offen")
    for j in range(4):
        A(f"v_mov_b32 v{12+j}, 0")
    A("v_cmp_gt_u32 vcc, 81, v0")
    A("s_and_saveexec_b64 s[10:11], vcc")
    A("s_cbranch_execz k2c_nozero")
    A("v_cmp_gt_u32 vcc, 51, v0")
    A("s_and_saveexec_b64 s[12:13], vcc")
    A("s_cbranch_execz k2c_z1")
    A(f"ds_write_b128 v6, v[12:15] offset:{HB}")
    A.label("k2c_z1")
    A("s_mov_b64 exec, s[12:13]")
    for (B, P) in ((S3B, S3P), (H2B, H2P), (S5B, S5P), (S7B, S7P), (S9B, S9P)):
        n = (2 * P - 16) // 16
        A(f"v_cmp_gt_u32 vcc, {n}, v0")
        A("s_and_saveexec_b64 s[12:13], vcc")
        A(f"s_cbranch_execz k2c_z_{B}")
        A(f"ds_write_b128 v6, v[12:15] offset:{B}")
        A.label(f"k2c_z_{B}")
        A("s_mov_b64 exec, s[12:13]")
    A.label("k2c_nozero")
    A("s_mov_b64 exec, -1")
    A("v_lshrrev_b32 v7, 4, v0")
    A("v_lshl_add_u32 v7, v7, 4, v6")
    A("v_add_u32 v16, 47, v0")
    A("v_lshrrev_b32 v16, 4, v16")
    A("v_lshl_add_u32 v16, v16, 4, v6")
    A("v_add_u32 v17, 46, v0")
    A("v_lshrrev_b32 v17, 4, v17")
    A("v_lshl_add_u32 v17, v17, 4, v6")
    A("s_waitcnt lgkmcnt(0)")
    A("v_mov_b32 v18, s65")
    A("v_add_f32 v18, 1.0, v18")
    round_bf16(A, 18, 18)
    A("v_mov_b32 v20, s64")
    A("s_and_b32 s7, s5, 1")
    A("s_lshl_b32 s7, s7, 4")
    A("s_lshr_b32 s67, s67, s7")
    A("s_lshl_b32 s67, s67, 16")
    A("s_waitcnt vmcnt(1)")
    HF = 232
    stamp(A, 1)
    for j in range(4):
        unpack2(A, HF+2*j, HF+2*j+1, 8+j)
    for j in range(4):
        A(f"v_pk_mul_f32 {vr(HF+2*j,2)}, {vr(HF+2*j,2)}, v[18:19] op_sel_hi:[1,0]")
    for j in range(4):
        A(f"v_cvt_pk_bf16_f32 v{8+j}, v{HF+2*j}, v{HF+2*j+1}")
    for j in range(4):
        unpack2(A, HF+2*j, HF+2*j+1, 8+j)
    for j in range(4):
        A(f"v_pk_add_f32 {vr(HF+2*j,2)}, {vr(HF+2*j,2)}, v[20:21] op_sel_hi:[1,0]")
    for j in range(4):
        A(f"v_cvt_pk_bf16_f32 v{8+j}, v{HF+2*j}, v{HF+2*j+1}")
    A(f"ds_write_b128 v7, v[8:11] offset:{HB + 816}")
    for j in range(4):
        unpack2(A, HF+2*j, HF+2*j+1, 8+j)
    A("s_waitcnt lgkmcnt(0)")
    A("s_barrier")
    stamp(A, 2)
    A(f"ds_read_b64 v[8:9], v17 offset:{HB + 744}")
    A(f"ds_read_b128 v[10:13], v16 offset:{HB + 752}")
    A(f"ds_read_b64 v[14:15], v7 offset:{HB + 816}")
    E = 24
    Q = 40
    S4 = 54
    S3 = 66
    S5 = 76
    S7 = 86
    S9 = 96
    A("s_waitcnt lgkmcnt(0)")
    for j in range(8):
        unpack2(A, E+2*j, E+2*j+1, 8+j)
    A("v_pk_mov_b32 v[104:105], v[8:9], v[10:11] op_sel:[1,0]")
    A("v_pk_mov_b32 v[106:107], v[10:11], v[12:13] op_sel:[1,0]")
    A(f"ds_write_b128 v6, v[104:107] offset:{H2B + 2*H2P - 16}")
    for k in range(14):
        A(f"v_add_f32 v{Q+k}, v{E+k}, v{E+k+1}")
    for m in range(10):
        A(f"v_add_f32 v{S3+m}, v{Q+m+3}, v{E+m+5}")
    for k in range(0, 12, 2):
        A(f"v_pk_add_f32 {vr(S4+k,2)}, {vr(Q+k,2)}, {vr(Q+k+2,2)}")
    for m in range(0, 10, 2):
        A(f"v_pk_add_f32 {vr(S5+m,2)}, {vr(S4+m+2,2)}, {vr(E+m+6,2)}")
    for m in range(-1, 8):
        A(f"v_add_f32 v{S7+m+1}, v{S4+m+1}, v{S3+m+2}")
    for m in range(0, 8, 2):
        A(f"v_pk_add_f32 {vr(S9+m,2)}, {vr(S4+m,2)}, {vr(S5+m+2,2)}")
    outs = ((S3, S3B, S3P, 104), (S5, S5B, S5P, 108), (S7+1, S7B, S7P, 112), (S9, S9B, S9P, 116), (S7, WB, WP, 120))
    for (src, B, P, t) in outs:
        for j in range(4):
            A(f"v_cvt_pk_bf16_f32 v{t+j}, v{src+2*j}, v{src+2*j+1}")
        A(f"ds_write_b128 v6, {vr(t,4)} offset:{B + 2*P - 16}")
    A("v_bfe_u32 v8, v1, 2, 2")
    A("v_and_b32 v9, 3, v1")
    A("v_lshl_add_u32 v10, v4, 3, v8")
    A("s_waitcnt vmcnt(0) lgkmcnt(0)")
    A("s_barrier")
    stamp(A, 3)
    ACC = 192
    DF = 96
    A("s_cmp_eq_u32 s4, 2")
    A("s_cbranch_scc1 k2c_seg1")
    A("s_cmp_eq_u32 s4, 3")
    A("s_cbranch_scc1 k2c_seg23")
    A("s_lshl_b32 s7, s4, 4")
    A("v_lshlrev_b32 v11, 3, v4")
    A("v_add_u32 v11, s7, v11")
    A("v_mul_u32_u24 v12, 272, v3")
    A("v_lshl_add_u32 v12, v11, 1, v12")
    A("v_cmp_le_u32 vcc, 16, v11")
    A("v_add_u32 v13, 16, v12")
    A("v_cndmask_b32 v13, v12, v13, vcc")
    NS = 12

    def rd0(s):
        z = 32*s + 112
        A(f"ds_read_b128 {vr(DF+4*(s%8),4)}, v{13 if s % 4 == 0 else 12} offset:{HB + 2*z + 16*(z >> 7)}")
    PF = 4
    for s in range(PF):
        rd0(s)
    first = [True] * 4
    for s in range(NS):
        if s + PF < NS:
            rd0(s + PF)
            A(f"s_waitcnt lgkmcnt({PF})")
        else:
            A(f"s_waitcnt lgkmcnt({NS - 1 - s})")
        for a in range(4):
            k = s - a
            if 0 <= k <= 8:
                c = "0" if first[a] else vr(ACC+4*a, 4)
                first[a] = False
                A(f"v_mfma_f32_16x16x32_bf16 {vr(ACC+4*a,4)}, {vr(TF+4*k,4)}, {vr(DF+4*(s%8),4)}, {c}")
    A("v_mul_u32_u24 v12, 528, v3")
    A("v_lshl_add_u32 v12, v4, 4, v12")
    A("s_lshl_b32 s7, s4, 6")
    A("v_add_u32 v12, s7, v12")
    for a in range(4):
        A(f"ds_write_b128 v12, {vr(ACC+4*a,4)} offset:{Y0B + 128*a}")
    A("s_branch k2c_epi")

    def seg_tr(ntile, phis, seqs, vbase, ustride, accbase, tfbase):
        items = [(phi, q) for phi in phis for q in range(len(seqs))]
        first = [True] * ntile

        def rd(n):
            phi, q = items[n]
            for hf in range(2):
                imm = ustride * (16*phi + 4*hf - 80) + seqs[q]
                assert 0 <= imm < 65536
                A(f"ds_read_b64_tr_b16 {vr(DF+4*(n%8)+2*hf,2)}, v{vbase} offset:{imm}")
        PFN = 4
        for n in range(min(PFN, len(items))):
            rd(n)
        for n in range(len(items)):
            if n + PFN < len(items):
                rd(n + PFN)
                A(f"s_waitcnt lgkmcnt({2*PFN})")
            else:
                A(f"s_waitcnt lgkmcnt({2*(len(items)-1-n)})")
            phi, q = items[n]
            for k in range(3):
                tau = phi - 2*k
                if 0 <= tau < ntile:
                    c = "0" if first[tau] else vr(accbase+4*tau, 4)
                    first[tau] = False
                    A(f"v_mfma_f32_16x16x32_bf16 {vr(accbase+4*tau,4)}, {vr(DF+4*(n%8),4)}, {vr(tfbase+4*(3*q+k),4)}, {c}")
        assert not any(first)

    A.label("k2c_seg1")
    A("v_mul_u32_u24 v12, 112, v9")
    A("v_add_u32 v12, v12, v10")
    A("v_lshlrev_b32 v12, 3, v12")
    seg_tr(7, range(11), [S3B + 2*S3P, H2B + 2*H2P], 12, 8, ACC, TF)
    A("v_mul_u32_u24 v12, 112, v4")
    A("v_add_u32 v12, v12, v3")
    A("v_lshlrev_b32 v12, 4, v12")
    for t in range(7):
        A(f"ds_write_b128 v12, {vr(ACC+4*t,4)} offset:{Y1B + 256*t}")
    A("s_branch k2c_epi")
    A.label("k2c_seg23")
    A("v_lshrrev_b32 v12, 1, v9")
    A("v_mul_u32_u24 v12, 96, v12")
    A("v_add_u32 v12, v12, v10")
    A("v_lshlrev_b32 v12, 4, v12")
    A("v_and_b32 v13, 1, v9")
    A("v_lshl_add_u32 v12, v13, 3, v12")
    A("v_lshlrev_b32 v13, 5, v10")
    A("v_lshl_add_u32 v13, v9, 3, v13")
    seg_tr(6, range(10), [S5B + 2*S5P, S3B + 2*S3P - 8], 12, 16, ACC, TF)
    seg_tr(4, range(3, 8), [S9B + 2*S9P, S7B + 2*S7P - 16], 13, 32, ACC + 24, TF + 24)
    A("v_lshrrev_b32 v12, 1, v4")
    A("v_mul_u32_u24 v12, 96, v12")
    A("v_add_u32 v12, v12, v3")
    A("v_lshlrev_b32 v12, 5, v12")
    A("v_and_b32 v13, 1, v4")
    A("v_lshl_add_u32 v12, v13, 4, v12")
    for t in range(6):
        A(f"ds_write_b128 v12, {vr(ACC+4*t,4)} offset:{Y2B + 512*t}")
    A("v_lshlrev_b32 v13, 6, v3")
    A("v_lshl_add_u32 v13, v4, 4, v13")
    for t in range(4):
        A(f"ds_write_b128 v13, {vr(ACC+24+4*t,4)} offset:{Y3B + 1024*t}")
    A.label("k2c_epi")
    stamp(A, 4)
    A("v_lshlrev_b32 v12, 5, v0")
    A("v_lshrrev_b32 v13, 4, v0")
    A("v_lshl_add_u32 v13, v13, 4, v12")
    A(f"v_add_u32 v13, {Y0B}, v13")
    A(f"v_add_u32 v14, {Y1B - 1024}, v12")
    A("v_cmp_le_u32 vcc, 32, v0")
    A("v_cndmask_b32 v14, 0, v14, vcc")
    A(f"v_add_u32 v15, {Y2B - 2048}, v12")
    A("v_cmp_le_u32 vcc, 64, v0")
    A("v_cndmask_b32 v15, 0, v15, vcc")
    A(f"v_add_u32 v16, {Y3B - 4096}, v12")
    A("v_cmp_le_u32 vcc, 128, v0")
    A("v_cndmask_b32 v16, 0, v16, vcc")
    A(f"v_add_u32 v17, {WB + 2*WP - 2048}, v6")
    A("v_cmp_le_u32 vcc, 127, v0")
    A("v_cndmask_b32 v17, 0, v17, vcc")
    A("s_waitcnt lgkmcnt(0)")
    A("s_barrier")
    stamp(A, 5)
    for n, a in enumerate((13, 14, 15, 16)):
        A(f"ds_read_b128 {vr(24+8*n,4)}, v{a}")
        A(f"ds_read_b128 {vr(28+8*n,4)}, v{a} offset:16")
    A("ds_read_b128 v[56:59], v17")
    A("v_mov_b32 v18, s68")
    A("v_mov_b32 v20, s67")
    A("v_mov_b32 v22, s66")
    for j in range(4):
        A(f"v_pk_mul_f32 {vr(72+2*j,2)}, {vr(HF+2*j,2)}, v[20:21] op_sel_hi:[1,0]")
    for j in range(4):
        A(f"v_cvt_pk_bf16_f32 v{80+j}, v{72+2*j}, v{73+2*j}")
    for j in range(4):
        unpack2(A, 72+2*j, 73+2*j, 80+j)
    for j in range(4):
        unpack2(A, 84+2*j, 85+2*j, 240+j)
    A("s_waitcnt lgkmcnt(5)")
    for j in range(4):
        A(f"v_pk_add_f32 {vr(24+2*j,2)}, {vr(24+2*j,2)}, {vr(32+2*j,2)}")
    A("s_waitcnt lgkmcnt(1)")
    for j in range(4):
        A(f"v_pk_add_f32 {vr(40+2*j,2)}, {vr(40+2*j,2)}, {vr(48+2*j,2)}")
    A("s_waitcnt lgkmcnt(0)")
    for j in range(4):
        unpack2(A, 60+2*j, 61+2*j, 56+j)
    for j in range(4):
        A(f"v_pk_add_f32 {vr(24+2*j,2)}, {vr(24+2*j,2)}, {vr(40+2*j,2)}")
    for j in range(4):
        A(f"v_pk_fma_f32 {vr(24+2*j,2)}, {vr(60+2*j,2)}, v[18:19], {vr(24+2*j,2)} op_sel_hi:[1,0,1]")

    def rnd(base):
        for j in range(4):
            A(f"v_cvt_pk_bf16_f32 v{80+j}, v{base+2*j}, v{base+2*j+1}")
        for j in range(4):
            unpack2(A, base+2*j, base+2*j+1, 80+j)
    rnd(24)
    for j in range(4):
        A(f"v_pk_add_f32 {vr(24+2*j,2)}, {vr(24+2*j,2)}, {vr(72+2*j,2)}")
    rnd(24)
    for j in range(4):
        A(f"v_pk_mul_f32 {vr(24+2*j,2)}, {vr(24+2*j,2)}, v[22:23] op_sel_hi:[1,0]")
    rnd(24)
    for j in range(4):
        A(f"v_pk_add_f32 {vr(24+2*j,2)}, {vr(24+2*j,2)}, {vr(84+2*j,2)}")
    for j in range(4):
        A(f"v_cvt_pk_bf16_f32 v{80+j}, v{24+2*j}, v{25+2*j}")
    A("buffer_store_dwordx4 v[80:83], v6, s[60:63], s9 offen")
    finish(A, 1)


def k2_wprep(A):
    RS = 160
    BACC = 448 * RS
    A.label("k2_wprep")
    A("s_and_b32 s5, s2, 1")
    A("s_lshr_b32 s6, s2, 1")
    A("s_cmp_eq_u32 s5, 0")
    A("s_cselect_b32 s48, s32, s34")
    A("s_cselect_b32 s49, s33, s35")
    A(f"s_mov_b32 s50, {D*F*2}")
    A("s_mov_b32 s51, 0x20000")
    srd(A, 52, P_WS, MOD_OFF, MOD_SZ)
    srd(A, 56, P_WS, W1F_OFF, W1F_SZ)
    srd(A, 60, P_WS, SB_OFF, SB_SZ)
    A("v_lshrrev_b32 v3, 3, v0")
    A("v_and_b32 v4, 7, v0")
    A(f"s_mov_b32 s7, {14*3584}")
    A("v_mul_lo_u32 v5, v3, s7")
    A("v_lshl_add_u32 v5, v4, 4, v5")
    A("v_mul_u32_u24 v6, 56, v3")
    for j in range(4):
        A(f"buffer_load_dwordx4 {vr(8+4*j,4)}, v6, s[52:55], 0 offen offset:{1344*4 - 4096 + 16*j}" if False else
          f"buffer_load_dwordx4 {vr(8+4*j,4)}, v6, s[52:55], s70 offen offset:{16*j}" if False else "s_nop 0")
    A("s_mov_b32 s70, 5376")
    A("s_mov_b32 s71, 7168")
    for j in range(4):
        A(f"buffer_load_dwordx4 {vr(8+4*j,4)}, v6, s[52:55], s70 offen offset:{16*j}")
    for j in range(4):
        A(f"buffer_load_dwordx4 {vr(24+4*j,4)}, v6, s[52:55], s71 offen offset:{16*j}")
    A("s_lshl_b32 s8, s6, 7")
    W = 40
    for s in range(14):
        A(f"buffer_load_dwordx4 {vr(W+4*s,4)}, v5, s[48:51], s8 offen")
        if s < 13:
            A("s_add_u32 s8, s8, 3584")
    A("v_mov_b32 v7, 0")
    A("v_lshlrev_b32 v100, 2, v1")
    A(f"ds_write_b32 v100, v7 offset:{BACC - 65536 if BACC >= 65536 else BACC}" if False else "s_nop 0")
    A(f"v_add_u32 v101, {BACC}, v100")
    A("ds_write_b32 v101, v7")
    A(f"v_mul_u32_u24 v102, {14*RS}, v3")
    A("v_lshl_add_u32 v102, v4, 4, v102")
    A("s_waitcnt vmcnt(14)")
    stamp(A, 1)
    for s in range(14):
        A(f"v_add_f32 v{128+2*s}, 1.0, v{24+s}")
    for s in range(14):
        round_bf16(A, 128+2*s, 128+2*s)
    for s in range(14):
        A(f"v_mov_b32 v{160+2*s}, v{8+s}")
    ACC = 104
    T = 112
    T2 = 120
    for s in range(14):
        A(f"s_waitcnt vmcnt({13-s})")
        for j in range(4):
            unpack2(A, T+2*j, T+2*j+1, W+4*s+j)
        for j in range(4):
            A(f"v_pk_mul_f32 {vr(T2+2*j,2)}, {vr(T+2*j,2)}, {vr(128+2*s,2)} op_sel_hi:[1,0]")
        for j in range(4):
            if s == 0:
                A(f"v_pk_mul_f32 {vr(ACC+2*j,2)}, {vr(T+2*j,2)}, {vr(160+2*s,2)} op_sel_hi:[1,0]")
            else:
                A(f"v_pk_fma_f32 {vr(ACC+2*j,2)}, {vr(T+2*j,2)}, {vr(160+2*s,2)}, {vr(ACC+2*j,2)} op_sel_hi:[1,0,1]")
        for j in range(4):
            A(f"v_cvt_pk_bf16_f32 v{W+4*s+j}, v{T2+2*j}, v{T2+2*j+1}")
        A(f"ds_write_b128 v102, {vr(W+4*s,4)} offset:{s*RS}")
    A("s_waitcnt lgkmcnt(0)")
    A("s_barrier")
    stamp(A, 2)
    A("v_lshlrev_b32 v103, 5, v4")
    A(f"v_add_u32 v103, {BACC}, v103")
    for j in range(8):
        A(f"ds_add_f32 v103, v{ACC+j} offset:{4*j}")
    A("v_lshrrev_b32 v8, 2, v1")
    A(f"v_mul_u32_u24 v8, {RS}, v8")
    A("v_and_b32 v9, 3, v1")
    A("v_lshl_add_u32 v8, v9, 3, v8")
    A("s_lshl_b32 s9, s4, 5")
    A("v_add_u32 v8, s9, v8")
    A(f"v_add_u32 v9, {8*32*RS}, v8")
    for j in range(4):
        A(f"v_mov_b32 v{12+j}, 0x3f803f80")
    FR = 16
    for k in range(14):
        for hf in range(2):
            kk = k if k < 8 else k - 8
            A(f"ds_read_b64_tr_b16 {vr(FR+4*k+2*hf,2)}, v{8 if k < 8 else 9} offset:{(32*kk + 16*hf)*RS}")
    A("s_lshl_b32 s10, s6, 2")
    A("s_add_u32 s10, s10, s4")
    A("s_mul_i32 s11, s10, 28")
    A("s_add_u32 s11, s11, s5")
    A("s_lshl_b32 s11, s11, 10")
    A("v_lshlrev_b32 v10, 4, v1")
    for k in range(14):
        A(f"s_waitcnt lgkmcnt({min(15, 2*(13-k))})")
        A(f"buffer_store_dwordx4 {vr(FR+4*k,4)}, v10, s[56:59], s11 offen")
        c = "0" if k == 0 else "v[72:75]"
        A(f"v_mfma_f32_16x16x32_bf16 v[72:75], {vr(FR+4*k,4)}, v[12:15], {c}")
        if k < 13:
            A("s_add_u32 s11, s11, 2048")
    A(f"s_mul_i32 s12, s5, {2*F*4}")
    A("s_lshl_b32 s13, s10, 6")
    A("s_add_u32 s12, s12, s13")
    A("v_and_b32 v11, 15, v1")
    A("v_cmp_eq_u32 vcc, 0, v11")
    A("s_and_saveexec_b64 s[14:15], vcc")
    A("buffer_store_dwordx4 v[72:75], v1, s[60:63], s12 offen")
    A("s_mov_b64 exec, s[14:15]")
    A("s_waitcnt lgkmcnt(0)")
    A("s_barrier")
    A("s_cmp_lg_u32 s4, 0")
    A("s_cbranch_scc1 k2_kernel_done")
    A("ds_read_b32 v8, v101")
    A(f"s_mul_i32 s12, s5, {2*F*4}")
    A("s_lshl_b32 s13, s6, 8")
    A("s_add_u32 s12, s12, s13")
    A(f"s_add_u32 s12, s12, {F*4}")
    A("s_waitcnt lgkmcnt(0)")
    A("buffer_store_dword v8, v100, s[60:63], s12 offen")
    finish(A, 1)


def gen_k2(A):
    prologue(A, "k2_kernel", K2_NWG)
    A(f"s_cmp_lt_u32 s2, {K2_WP}")
    A("s_cbranch_scc1 k2_wprep")
    k2_conv(A)
    k2_wprep(A)
    A.label("k2_kernel_done")
    finish(A, 1)
    A.label("k2_kernel_exit")
    A("s_endpgm")


KERNELS = [("k1_kernel", gen_k1, K1_NWG, 256, K1_LDS, 180, 0),
           ("k2_kernel", gen_k2, K2_NWG, 256, K2_LDS, 256, 0)]
try:
    import gen3
    KERNELS += gen3.KERNELS
except ImportError:
    pass
```

```python
from gen import *

K3_NWG = 256
STATS = 448 * 256
K3_LDS = STATS + 1024


def gen_k3(A):
    prologue(A, "k3_kernel", K3_NWG)
    A("s_and_b32 s5, s2, 7")
    A("s_lshr_b32 s6, s2, 3")
    A("s_and_b32 s7, s5, 1")
    A("s_lshl_b32 s7, s7, 3")
    A("s_and_b32 s8, s6, 7")
    A("s_add_u32 s7, s7, s8")
    A("s_lshr_b32 s8, s5, 1")
    A("s_lshl_b32 s8, s8, 2")
    A("s_lshr_b32 s9, s6, 3")
    A("s_add_u32 s8, s8, s9")
    srd(A, 48, P_WS, X2T_OFF, XT_SZ)
    srd(A, 52, P_WS, W1F_OFF, W1F_SZ)
    srd(A, 56, P_WS, SB_OFF, SB_SZ)
    srd(A, 60, P_WS, HHF_OFF, HHF_SZ)
    srd(A, 64, P_WS, X2N_OFF, XT_SZ)
    A("v_lshrrev_b32 v3, 4, v1")
    A("v_and_b32 v4, 15, v1")
    A("v_lshlrev_b32 v5, 1, v3")
    A("v_xor_b32 v6, v4, v5")
    A("v_lshlrev_b32 v6, 4, v6")
    A("v_lshl_add_u32 v6, v3, 12, v6")
    A("v_xor_b32 v7, 0x80, v6")
    A("s_mul_i32 s10, s4, 14")
    A("s_lshl_b32 s11, s10, 14")
    A("s_lshl_b32 s12, s7, 8")
    A("s_add_u32 s11, s11, s12")
    A("s_lshl_b32 s12, s10, 10")
    for i in range(14):
        A("s_mov_b32 m0, s12")
        A(f"buffer_load_dwordx4 v{6 + i % 2}, s[48:51], s11 offen lds")
        if i < 13:
            A("s_add_u32 s11, s11, 16384")
            A("s_add_u32 s12, s12, 1024")
    AD, AD2, BR, CO, WF, ACC = 8, 16, 24, 40, 56, 168
    A("v_lshrrev_b32 v5, 2, v1")
    A("v_and_b32 v2, 7, v5")
    A("v_lshlrev_b32 v5, 8, v5")
    A("v_and_b32 v40, 3, v1")
    A("v_lshl_add_u32 v5, v40, 3, v5")
    for t in range(8):
        A(f"v_xor_b32 v{AD+t}, {t}, v2")
        A(f"v_lshl_add_u32 v{AD+t}, v{AD+t}, 5, v5")
        A(f"v_add_u32 v{AD2+t}, 0x10000, v{AD+t}")
    A("v_lshlrev_b32 v2, 4, v1")
    A("s_cmp_eq_u32 s4, 7")
    A("s_cbranch_scc1 k3_stats")
    A("s_mul_i32 s13, s8, 7")
    A("s_add_u32 s13, s13, s4")
    A("s_mul_i32 s14, s13, 28672")
    for n in range(28):
        A(f"buffer_load_dwordx4 {vr(WF+4*n,4)}, v2, s[52:55], s14 offen offset:{(n%4)*1024}")
        if n % 4 == 3 and n < 27:
            A("s_add_u32 s14, s14, 4096")
    A("v_lshlrev_b32 v5, 4, v3")
    A("s_lshl_b32 s14, s13, 6")
    for a in range(4):
        A(f"buffer_load_dwordx4 {vr(CO+4*a,4)}, v5, s[56:59], s14 offen")
        if a < 3:
            A("s_add_u32 s14, s14, 7168")
    stamp(A, 1)
    A("s_waitcnt vmcnt(32)")
    stamp(A, 2)
    A("s_barrier")
    stamp(A, 3)

    steps = [(k, t) for k in range(14) for t in range(8)]
    PF = 3

    def rdB(n):
        k, t = steps[n]
        for hf in range(2):
            a = (AD if k < 8 else AD2) + t
            A(f"ds_read_b64_tr_b16 {vr(BR+4*(n%4)+2*hf,2)}, v{a} offset:{(k%8)*8192 + hf*4096}")

    def mainloop(body, need_w):
        for n in range(PF):
            rdB(n)
        for n, (k, t) in enumerate(steps):
            if n + PF < len(steps):
                rdB(n + PF)
                lg = 2 * PF
            else:
                lg = 2 * (len(steps) - 1 - n)
            if t == 0 and need_w:
                A(f"s_waitcnt vmcnt({4 + 2*(13-k)}) lgkmcnt({lg})")
            else:
                A(f"s_waitcnt lgkmcnt({lg})")
            body(n, k, t)

    def gemm_body(n, k, t):
        for m in range(2):
            acc = ACC + 32*m + 4*t
            c = "0" if k == 0 else vr(acc, 4)
            A(f"v_mfma_f32_16x16x32_bf16 {vr(acc,4)}, {vr(WF+4*(2*k+m),4)}, {vr(BR+4*(n%4),4)}, {c}")
    mainloop(gemm_body, True)
    stamp(A, 4)
    A("s_waitcnt vmcnt(0)")
    A("s_barrier")
    stamp(A, 5)
    ST = 56
    A("v_lshlrev_b32 v5, 3, v4")
    A(f"v_add_u32 v5, {STATS}, v5")
    for t in range(8):
        A(f"ds_read_b64 {vr(ST+2*t,2)}, v5 offset:{128*t}")
    A("s_mul_i32 s14, s7, 448")
    A("s_lshr_b32 s15, s13, 1")
    A("s_add_u32 s14, s14, s15")
    A("s_lshl_b32 s14, s14, 10")
    A("s_and_b32 s15, s13, 1")
    A("s_lshl_b32 s15, s15, 3")
    A("s_add_u32 s14, s14, s15")
    A(f"v_mov_b32 v72, {f32(-LOG2E)}")
    A("v_mov_b32 v74, 1.0")
    SG, BG, SU, BU = CO, CO+4, CO+8, CO+12
    for t in range(8):
        A(f"s_waitcnt lgkmcnt({7-t})")
        st = vr(ST+2*t, 2)
        T = 80 + 16*(t % 2)
        G, U = ACC + 4*t, ACC + 32 + 4*t
        for p in range(2):
            A(f"v_pk_fma_f32 {vr(T+2*p,2)}, {vr(SG+2*p,2)}, {st}, {vr(BG+2*p,2)} op_sel:[0,1,0] op_sel_hi:[1,1,1] neg_lo:[0,1,0] neg_hi:[0,1,0]")
            A(f"v_pk_fma_f32 {vr(T+4+2*p,2)}, {vr(SU+2*p,2)}, {st}, {vr(BU+2*p,2)} op_sel:[0,1,0] op_sel_hi:[1,1,1] neg_lo:[0,1,0] neg_hi:[0,1,0]")
        for p in range(2):
            A(f"v_pk_fma_f32 {vr(T+2*p,2)}, {vr(G+2*p,2)}, {st}, {vr(T+2*p,2)} op_sel_hi:[1,0,1]")
            A(f"v_pk_fma_f32 {vr(T+4+2*p,2)}, {vr(U+2*p,2)}, {st}, {vr(T+4+2*p,2)} op_sel_hi:[1,0,1]")
        for p in range(2):
            A(f"v_pk_mul_f32 {vr(T+8+2*p,2)}, {vr(T+2*p,2)}, v[72:73] op_sel_hi:[1,0]")
        for j in range(4):
            A(f"v_exp_f32 v{T+8+j}, v{T+8+j}")
        for p in range(2):
            A(f"v_pk_mul_f32 {vr(T+2*p,2)}, {vr(T+2*p,2)}, {vr(T+4+2*p,2)}")
        for p in range(2):
            A(f"v_pk_add_f32 {vr(T+8+2*p,2)}, {vr(T+8+2*p,2)}, v[74:75] op_sel_hi:[1,0]")
        for j in range(4):
            A(f"v_rcp_f32 v{T+8+j}, v{T+8+j}")
        for p in range(2):
            A(f"v_pk_mul_f32 {vr(T+2*p,2)}, {vr(T+2*p,2)}, {vr(T+8+2*p,2)}")
        for p in range(2):
            A(f"v_cvt_pk_bf16_f32 v{T+12+p}, v{T+2*p}, v{T+2*p+1}")
        A(f"buffer_store_dwordx2 {vr(T+12,2)}, v2, s[60:63], s14 offen")
        if t < 7:
            A(f"s_add_u32 s14, s14, {56*1024}")
    finish(A, 2)

    A.label("k3_stats")
    for j in range(4):
        A(f"v_mov_b32 v{CO+j}, 0x3f803f80")
    A("s_waitcnt vmcnt(0)")
    A("s_barrier")

    def stat_body(n, k, t):
        b = vr(BR+4*(n % 4), 4)
        acc = ACC + 4*t
        c = "0" if k == 0 else vr(acc, 4)
        A(f"v_mfma_f32_16x16x32_bf16 {vr(acc,4)}, {b}, {b}, {c}")
        acc = ACC + 32 + 4*t
        c = "0" if k == 0 else vr(acc, 4)
        A(f"v_mfma_f32_16x16x32_bf16 {vr(acc,4)}, {vr(CO,4)}, {b}, {c}")
    stamp(A, 3)
    mainloop(stat_body, False)
    stamp(A, 4)
    A("v_and_b32 v5, 3, v4")
    A("v_cmp_eq_u32 s[70:71], 1, v5")
    A("v_cmp_eq_u32 s[72:73], 2, v5")
    A("v_cmp_eq_u32 s[74:75], 3, v5")
    A("v_lshrrev_b32 v5, 2, v4")
    A("v_cmp_eq_u32 s[76:77], v5, v3")
    A(f"v_mov_b32 v44, {f32(1.0/448)}")
    Qr, Mr = 56, 64
    for t in range(8):
        g = ACC + 4*t
        A(f"v_cndmask_b32 v{Qr+t}, v{g}, v{g+1}, s[70:71]")
        A(f"v_cndmask_b32 v{Qr+t}, v{Qr+t}, v{g+2}, s[72:73]")
        A(f"v_cndmask_b32 v{Qr+t}, v{Qr+t}, v{g+3}, s[74:75]")
        A(f"v_mul_f32 v{Mr+t}, v{ACC+32+4*t}, v44")
    for t in range(8):
        A(f"v_mul_f32 v{Qr+t}, v{Qr+t}, v44")
    for t in range(8):
        A(f"v_fma_f32 v{Qr+t}, -v{Mr+t}, v{Mr+t}, v{Qr+t}")
    for t in range(8):
        A(f"v_max_f32 v{Qr+t}, 0, v{Qr+t}")
    for t in range(8):
        round_bf16(A, Qr+t, Qr+t)
        round_bf16(A, Mr+t, Mr+t)
    for t in range(8):
        A(f"v_add_f32 v{Qr+t}, {f32(1e-5)}, v{Qr+t}")
    for t in range(8):
        round_bf16(A, Qr+t, Qr+t)
    for t in range(8):
        A(f"v_sqrt_f32 v{Qr+t}, v{Qr+t}")
    for t in range(8):
        round_bf16(A, Qr+t, Qr+t)
    for t in range(8):
        A(f"v_rcp_f32 v{72+2*t}, v{Qr+t}")
    for t in range(8):
        A(f"v_mul_f32 v{73+2*t}, v{72+2*t}, v{Mr+t}")
    A("v_lshlrev_b32 v5, 3, v4")
    A(f"v_add_u32 v5, {STATS}, v5")
    A("s_mov_b64 exec, s[76:77]")
    for t in range(8):
        A(f"ds_write_b64 v5, {vr(72+2*t,2)} offset:{128*t}")
    A("s_mov_b64 exec, -1")
    A("s_waitcnt lgkmcnt(0)")
    A("s_barrier")
    A("s_cmp_ge_u32 s8, 14")
    A("s_cbranch_scc1 k3_kernel_done")
    A("s_lshl_b32 s14, s8, 13")
    for t in range(8):
        A(f"v_add_u32 v{AD+t}, s14, v{AD+t}")
    for t in range(8):
        for hf in range(2):
            A(f"ds_read_b64_tr_b16 {vr(88+4*t+2*hf,2)}, v{AD+t} offset:{hf*4096}")
    A("v_mul_u32_u24 v5, 896, v4")
    A("v_lshl_add_u32 v5, v3, 3, v5")
    A(f"s_mul_i32 s14, s7, {128*896}")
    A("s_lshl_b32 s15, s8, 6")
    A("s_add_u32 s14, s14, s15")
    for t in range(8):
        A(f"s_waitcnt lgkmcnt({2*(7-t)})")
        A(f"buffer_store_dwordx2 {vr(88+4*t,2)}, v5, s[64:67], s14 offen")
        A(f"buffer_store_dwordx2 {vr(90+4*t,2)}, v5, s[64:67], s14 offen offset:32")
        if t < 7:
            A(f"s_add_u32 s14, s14, {16*896}")
    A.label("k3_kernel_done")
    finish(A, 2)
    A.label("k3_kernel_exit")
    A("s_endpgm")


K4_NWG = 224
K4_LDS = 65536


def gen_k4(A):
    prologue(A, "k4_kernel", K4_NWG)
    A("s_and_b32 s5, s2, 7")
    A("s_lshr_b32 s6, s2, 3")
    A("s_mul_i32 s7, s6, 37")
    A("s_lshr_b32 s7, s7, 8")
    A("s_mul_i32 s8, s7, 7")
    A("s_sub_u32 s8, s6, s8")
    A("s_lshl_b32 s5, s5, 2")
    A("s_add_u32 s7, s7, s5")
    srd(A, 48, P_WS, W2F_OFF, W2F_SZ)
    srd(A, 52, P_WS, HHF_OFF, HHF_SZ)
    srd(A, 56, P_WS, MOD_OFF, MOD_SZ)
    srd(A, 60, P_WS, X2N_OFF, XT_SZ)
    srd(A, 64, P_OUT, 0, XT_SZ)
    A("v_lshrrev_b32 v3, 4, v1")
    A("v_and_b32 v4, 15, v1")
    A("v_lshlrev_b32 v2, 4, v1")
    A("v_lshlrev_b32 v5, 6, v3")
    A("s_lshl_b32 s9, s8, 8")
    A(f"s_add_u32 s9, s9, {2240*4}")
    for j in range(4):
        A(f"buffer_load_dwordx4 {ar(64+4*j,4)}, v5, s[56:59], s9 offen offset:{16*j}")
    A("v_mul_u32_u24 v6, 896, v4")
    A("v_lshl_add_u32 v6, v3, 5, v6")
    A("s_lshl_b32 s10, s7, 2")
    A("s_add_u32 s10, s10, s4")
    A(f"s_mul_i32 s10, s10, {16*896}")
    A("s_lshl_b32 s11, s8, 7")
    A("s_add_u32 s10, s10, s11")
    for j in range(2):
        A(f"buffer_load_dwordx4 {ar(80+4*j,4)}, v6, s[60:63], s10 offen offset:{16*j}")
    A("s_mul_i32 s12, s8, 56")
    A("s_mul_i32 s13, s4, 14")
    A("s_add_u32 s12, s12, s13")
    A("s_lshl_b32 s12, s12, 12")
    A("s_mul_i32 s14, s7, 224")
    A("s_add_u32 s14, s14, s13")
    A("s_lshl_b32 s14, s14, 10")
    for tt in range(4):
        A(f"s_add_u32 s{70+tt}, s14, {tt*57344}")
    P = 7
    FB = 24

    def ld(k):
        b = FB + 32*(k % P)
        for jt in range(4):
            A(f"buffer_load_dwordx4 {vr(b+4*jt,4)}, v2, s[48:51], s12 offen offset:{1024*jt}")
        for tt in range(4):
            A(f"buffer_load_dwordx4 {vr(b+16+4*tt,4)}, v2, s[52:55], s{70+tt} offen offset:{1024*(k%4)}")
        A("s_add_u32 s12, s12, 4096")
        if k % 4 == 3:
            for tt in range(4):
                A(f"s_add_u32 s{70+tt}, s{70+tt}, 4096")
    for k in range(P):
        ld(k)
    stamp(A, 1)
    for k in range(14):
        if k == 1:
            stamp(A, 2)
        if k == 7:
            stamp(A, 3)
        issued = min(14, k + P)
        A(f"s_waitcnt vmcnt({8*(issued - k - 1)})")
        b = FB + 32*(k % P)
        for tt in range(4):
            for jt in range(4):
                acc = 16*tt + 4*jt
                c = "0" if k == 0 else ar(acc, 4)
                A(f"v_mfma_f32_16x16x32_bf16 {ar(acc,4)}, {vr(b+4*jt,4)}, {vr(b+16+4*tt,4)}, {c}")
        if k + P < 14:
            ld(k + P)
    stamp(A, 4)
    A("s_lshl_b32 s15, s4, 12")
    A("v_add_u32 v7, s15, v2")
    for tt in range(4):
        A(f"s_cmp_eq_u32 s4, {tt}")
        A(f"s_cbranch_scc1 k4_skip{tt}")
        for jt in range(4):
            A(f"ds_write_b128 v7, {ar(16*tt+4*jt,4)} offset:{tt*16384 + jt*1024}")
        A.label(f"k4_skip{tt}")
    for tt in range(4):
        A(f"s_cmp_lg_u32 s4, {tt}")
        A(f"s_cbranch_scc1 k4_own{tt}")
        for j in range(16):
            A(f"v_accvgpr_read_b32 v{8+j}, a{16*tt+j}")
        A.label(f"k4_own{tt}")
    A("s_waitcnt lgkmcnt(0)")
    A("s_barrier")
    stamp(A, 5)
    A("s_lshl_b32 s15, s4, 14")
    for s in range(1, 4):
        A(f"s_add_u32 s16, s4, {s}")
        A("s_and_b32 s16, s16, 3")
        A("s_lshl_b32 s16, s16, 12")
        A("s_add_u32 s16, s16, s15")
        A(f"v_add_u32 v{24+s}, s16, v2")
    R = 32
    for s in range(1, 4):
        for jt in range(4):
            A(f"ds_read_b128 {vr(R+16*(s-1)+4*jt,4)}, v{24+s} offset:{jt*1024}")
    GB, X2 = 80, 96
    for j in range(16):
        A(f"v_accvgpr_read_b32 v{GB+j}, a{64+j}")
    for j in range(8):
        A(f"v_accvgpr_read_b32 v{112+j}, a{80+j}")
    for j in range(8):
        unpack2(A, X2+2*j, X2+2*j+1, 112+j)
    for s in range(3):
        A(f"s_waitcnt lgkmcnt({4*(2-s)})")
        for p in range(8):
            A(f"v_pk_add_f32 {vr(8+2*p,2)}, {vr(8+2*p,2)}, {vr(R+16*s+2*p,2)}")

    def rnd():
        for p in range(8):
            A(f"v_cvt_pk_bf16_f32 v{112+p}, v{8+2*p}, v{9+2*p}")
        for p in range(8):
            unpack2(A, 8+2*p, 9+2*p, 112+p)
    rnd()
    for p in range(8):
        A(f"v_pk_mul_f32 {vr(8+2*p,2)}, {vr(8+2*p,2)}, {vr(GB+2*p,2)}")
    rnd()
    for p in range(8):
        A(f"v_pk_add_f32 {vr(8+2*p,2)}, {vr(8+2*p,2)}, {vr(X2+2*p,2)}")
    for p in range(8):
        A(f"v_cvt_pk_bf16_f32 v{112+p}, v{8+2*p}, v{9+2*p}")
    A("buffer_store_dwordx4 v[112:115], v6, s[64:67], s10 offen")
    A("buffer_store_dwordx4 v[116:119], v6, s[64:67], s10 offen offset:16")
    finish(A, 3)
    A.label("k4_kernel_exit")
    A("s_endpgm")


KERNELS = [("k3_kernel", gen_k3, K3_NWG, 512, K3_LDS, 232, 0),
           ("k4_kernel", gen_k4, K4_NWG, 256, K4_LDS, 248, 88)]
```

```python
import os
from gen import *
from gen12 import SPIN_MAX, SYNC_OFF, SYNC_SZ

K34_NWG = 256
STATS = 131072
LFLAG = STATS + 1024
K34_LDS = STATS + 1024 + 256


def gen_k34(A):
    prologue(A, "k34_kernel", K34_NWG)
    A("s_and_b32 s5, s2, 7")
    A("s_lshr_b32 s6, s2, 3")
    A("s_and_b32 s7, s5, 1")
    A("s_lshl_b32 s7, s7, 3")
    A("s_and_b32 s8, s6, 7")
    A("s_add_u32 s7, s7, s8")
    A("s_lshr_b32 s8, s5, 1")
    A("s_lshl_b32 s8, s8, 2")
    A("s_lshr_b32 s9, s6, 3")
    A("s_add_u32 s8, s8, s9")
    srd(A, 48, P_WS, X2T_OFF, XT_SZ)
    srd(A, 52, P_WS, W1F_OFF, W1F_SZ)
    srd(A, 56, P_WS, SB_OFF, SB_SZ)
    srd(A, 60, P_WS, HHF_OFF, HHF_SZ)
    srd(A, 64, P_WS, W2F_OFF, W2F_SZ)
    srd(A, 72, P_WS, SYNC_OFF, SYNC_SZ)
    A("v_lshrrev_b32 v3, 4, v1")
    A("v_and_b32 v4, 15, v1")
    A("v_lshlrev_b32 v5, 1, v3")
    A("v_xor_b32 v6, v4, v5")
    A("v_lshlrev_b32 v6, 4, v6")
    A("v_lshl_add_u32 v6, v3, 12, v6")
    A("v_xor_b32 v7, 0x80, v6")
    A("s_mul_i32 s10, s4, 14")
    A("s_lshl_b32 s11, s10, 14")
    A("s_lshl_b32 s12, s7, 8")
    A("s_add_u32 s11, s11, s12")
    A("s_lshl_b32 s12, s10, 10")
    for i in range(14):
        A("s_mov_b32 m0, s12")
        A(f"buffer_load_dwordx4 v{6 + i % 2}, s[48:51], s11 offen lds")
        if i < 13:
            A("s_add_u32 s11, s11, 16384")
            A("s_add_u32 s12, s12, 1024")
    AD, AD2, BR, CO, WF, ACC = 8, 16, 24, 40, 56, 168
    X2R, GBR = 232, 236
    A("v_lshrrev_b32 v5, 2, v1")
    A("v_and_b32 v2, 7, v5")
    A("v_lshlrev_b32 v5, 8, v5")
    A("v_and_b32 v40, 3, v1")
    A("v_lshl_add_u32 v5, v40, 3, v5")
    for t in range(8):
        A(f"v_xor_b32 v{AD+t}, {t}, v2")
        A(f"v_lshl_add_u32 v{AD+t}, v{AD+t}, 5, v5")
        A(f"v_add_u32 v{AD2+t}, 0x10000, v{AD+t}")
    A("v_lshlrev_b32 v250, 4, v1")
    A("s_cmp_ge_u32 s8, 7")
    A("s_cselect_b32 s16, 1, 0")
    A("s_mul_i32 s17, s16, 7")
    A("s_sub_u32 s17, s8, s17")

    steps = [(k, t) for k in range(14) for t in range(8)]
    PF = 3
    WPF = 4

    def rdB(n):
        k, t = steps[n]
        for hf in range(2):
            a = (AD if k < 8 else AD2) + t
            A(f"ds_read_b64_tr_b16 {vr(BR+4*(n%4)+2*hf,2)}, v{a} offset:{(k%8)*8192 + hf*4096}")

    issued = []

    def after(tag):
        idx = max(i for i, t_ in enumerate(issued) if t_ == tag)
        return len(issued) - 1 - idx

    def ldW(k):
        for m in range(2):
            n = 2*k + m
            A(f"buffer_load_dwordx4 {vr(WF+4*n,4)}, v250, s[52:55], s14 offen offset:{(n%4)*1024}")
            issued.append(("W", k))
        if k % 2 == 1:
            A("s_add_u32 s14, s14, 4096")

    def ldW2(n2):
        A(f"buffer_load_dwordx4 {vr(WF+4*n2,4)}, v250, s[64:67], s22 offen offset:{1024*(n2%4)}")
        issued.append(("W2", n2))
        if n2 % 4 == 3:
            A("s_add_u32 s22, s22, 4096")

    def w2_base():
        A("s_mul_i32 s22, s17, 56")
        A("s_mul_i32 s23, s4, 7")
        A("s_add_u32 s22, s22, s23")
        A("s_lshl_b32 s22, s22, 12")

    def mainloop(body, need_w):
        for n in range(PF):
            rdB(n)
        for n, (k, t) in enumerate(steps):
            if n + PF < len(steps):
                rdB(n + PF)
                lg = 2 * PF
            else:
                lg = 2 * (len(steps) - 1 - n)
            if t == 0 and need_w:
                A(f"s_waitcnt vmcnt({after(('W', k))}) lgkmcnt({lg})")
            else:
                A(f"s_waitcnt lgkmcnt({lg})")
            body(n, k, t)
            if need_w and t == 1 and k + WPF <= 13:
                ldW(k + WPF)
            if k >= 1 and t in (3, 5):
                ldW2(2*(k-1) + (t == 5))

    def g2_prefetch():
        ldW2(26)
        ldW2(27)
        A("v_bfe_u32 v244, v1, 2, 2")
        A("v_lshl_add_u32 v244, v3, 4, v244")
        A("s_min_u32 s18, s17, 6")
        A("s_lshl_b32 s18, s18, 6")
        A("s_and_b32 s19, s4, 1")
        A("s_lshl_b32 s20, s19, 3")
        A("s_add_u32 s18, s18, s20")
        A("v_add_u32 v244, s18, v244")
        A("s_lshr_b32 s20, s4, 1")
        A("s_lshl_b32 s21, s16, 2")
        A("s_add_u32 s21, s21, s20")
        A("v_bfe_u32 v245, v1, 2, 2")
        A("v_xor_b32 v246, s21, v245")
        A("v_xor_b32 v247, 4, v246")
        A("v_and_b32 v245, 3, v1")
        A("v_lshlrev_b32 v245, 3, v245")
        A("v_lshl_add_u32 v245, v244, 8, v245")
        A("v_lshl_add_u32 v246, v246, 5, v245")
        A("v_lshl_add_u32 v247, v247, 5, v245")
        A(f"ds_read_b64_tr_b16 {vr(X2R,2)}, v246")
        A(f"ds_read_b64_tr_b16 {vr(X2R+2,2)}, v247 offset:1024")
        srd(A, 68, P_WS, MOD_OFF, MOD_SZ)
        A("v_lshlrev_b32 v244, 6, v3")
        A("s_lshl_b32 s23, s18, 2")
        A(f"s_add_u32 s23, s23, {2240*4}")
        for j in range(2):
            A(f"buffer_load_dwordx4 {vr(GBR+4*j,4)}, v244, s[68:71], s23 offen offset:{16*j}")

    w2_base()
    A("s_cmp_eq_u32 s4, 0")
    A("s_cbranch_scc1 k34_stats")
    A("s_mul_i32 s13, s8, 7")
    A("s_add_u32 s13, s13, s4")
    A("s_sub_u32 s13, s13, 1")
    A("v_lshlrev_b32 v5, 4, v3")
    A("s_lshl_b32 s14, s13, 6")
    for a in range(4):
        A(f"buffer_load_dwordx4 {vr(CO+4*a,4)}, v5, s[56:59], s14 offen")
        if a < 3:
            A("s_add_u32 s14, s14, 7168")
    A("s_mul_i32 s14, s13, 28672")
    for k in range(WPF):
        ldW(k)
    stamp(A, 1)
    A(f"s_waitcnt vmcnt({4 + 2*WPF})")
    A("s_barrier")
    stamp(A, 2)

    def gemm_body(n, k, t):
        for m in range(2):
            acc = ACC + 32*m + 4*t
            c = "0" if k == 0 else vr(acc, 4)
            A(f"v_mfma_f32_16x16x32_bf16 {vr(acc,4)}, {vr(WF+4*(2*k+m),4)}, {vr(BR+4*(n%4),4)}, {c}")
    mainloop(gemm_body, True)
    stamp(A, 3)
    g2_prefetch()
    A(f"v_mov_b32 v5, {LFLAG}")
    A(f"s_mov_b32 s78, {SPIN_MAX}")
    A.label("k34_stw")
    A("ds_read_b32 v2, v5")
    A("s_waitcnt lgkmcnt(0)")
    A("v_readfirstlane_b32 s79, v2")
    A("s_cmp_lg_u32 s79, 0")
    A("s_cbranch_scc1 k34_stw_done")
    A("s_sub_u32 s78, s78, 1")
    A("s_cmp_eq_u32 s78, 0")
    A("s_cbranch_scc1 k34_stw_done")
    A("s_sleep 2")
    A("s_branch k34_stw")
    A.label("k34_stw_done")
    stamp(A, 4)
    ST = 8
    A("v_lshlrev_b32 v5, 3, v4")
    A(f"v_add_u32 v5, {STATS}, v5")
    for t in range(8):
        A(f"ds_read_b64 {vr(ST+2*t,2)}, v5 offset:{128*t}")
    A("s_mul_i32 s14, s7, 448")
    A("s_lshr_b32 s15, s13, 1")
    A("s_add_u32 s14, s14, s15")
    A("s_lshl_b32 s14, s14, 10")
    A("s_and_b32 s15, s13, 1")
    A("s_lshl_b32 s15, s15, 9")
    A("s_add_u32 s14, s14, s15")
    A("v_and_b32 v248, 1, v3")
    A(f"v_mul_u32_u24 v248, {57344}, v248")
    A("v_lshrrev_b32 v249, 1, v3")
    A("v_lshl_add_u32 v248, v249, 8, v248")
    A("v_lshl_add_u32 v248, v4, 4, v248")
    A(f"v_mov_b32 v252, {f32(-LOG2E)}")
    A("v_mov_b32 v254, 1.0")
    SG, BG, SU, BU = CO, CO+4, CO+8, CO+12
    T = 24
    for t in range(8):
        A(f"s_waitcnt lgkmcnt({7-t})")
        st = vr(ST+2*t, 2)
        G, U = ACC + 4*t, ACC + 32 + 4*t
        rm = ST+2*t+1
        for j in range(4):
            A(f"v_fma_f32 v{T+j}, v{SG+j}, -v{rm}, v{BG+j}")
            A(f"v_fma_f32 v{T+4+j}, v{SU+j}, -v{rm}, v{BU+j}")
        for p in range(2):
            A(f"v_pk_fma_f32 {vr(T+2*p,2)}, {vr(G+2*p,2)}, {st}, {vr(T+2*p,2)} op_sel_hi:[1,0,1]")
            A(f"v_pk_fma_f32 {vr(T+4+2*p,2)}, {vr(U+2*p,2)}, {st}, {vr(T+4+2*p,2)} op_sel_hi:[1,0,1]")
        for p in range(2):
            A(f"v_pk_mul_f32 {vr(T+8+2*p,2)}, {vr(T+2*p,2)}, v[252:253] op_sel_hi:[1,0]")
        for j in range(4):
            A(f"v_exp_f32 v{T+8+j}, v{T+8+j}")
        for p in range(2):
            A(f"v_pk_mul_f32 {vr(T+2*p,2)}, {vr(T+2*p,2)}, {vr(T+4+2*p,2)}")
        for p in range(2):
            A(f"v_pk_add_f32 {vr(T+8+2*p,2)}, {vr(T+8+2*p,2)}, v[254:255] op_sel_hi:[1,0]")
        for j in range(4):
            A(f"v_rcp_f32 v{T+8+j}, v{T+8+j}")
        for p in range(2):
            A(f"v_pk_mul_f32 {vr(T+2*p,2)}, {vr(T+2*p,2)}, {vr(T+8+2*p,2)}")
        D0 = ACC + 4*(t & ~1) + 2*(t & 1)
        for p in range(2):
            A(f"v_cvt_pk_bf16_f32 v{D0+p}, v{T+2*p}, v{T+2*p+1}")
        if t % 2 == 1:
            b = ACC + 4*(t - 1)
            A(f"v_permlane16_swap_b32 v{b}, v{b+2}")
            A(f"v_permlane16_swap_b32 v{b+1}, v{b+3}")
            A(f"buffer_store_dwordx4 {vr(b,4)}, v248, s[60:63], s14 offen sc1")
            if t < 7:
                A(f"s_add_u32 s14, s14, {2*56*1024}")
    A("s_branch k34_sig")

    A.label("k34_stats")
    del issued[:]
    for j in range(4):
        A(f"v_mov_b32 v{CO+j}, 0x3f803f80")
    A("v_mov_b32 v2, 0")
    A(f"v_mov_b32 v5, {LFLAG}")
    A("ds_write_b32 v5, v2")
    A("s_waitcnt vmcnt(0) lgkmcnt(0)")
    A("s_barrier")
    stamp(A, 2)

    def stat_body(n, k, t):
        b = vr(BR+4*(n % 4), 4)
        acc = ACC + 4*t
        c = "0" if k == 0 else vr(acc, 4)
        A(f"v_mfma_f32_16x16x32_bf16 {vr(acc,4)}, {b}, {b}, {c}")
        acc = ACC + 32 + 4*t
        c = "0" if k == 0 else vr(acc, 4)
        A(f"v_mfma_f32_16x16x32_bf16 {vr(acc,4)}, {vr(CO,4)}, {b}, {c}")
    mainloop(stat_body, False)
    stamp(A, 3)
    A("v_and_b32 v5, 3, v4")
    A("v_cmp_eq_u32 s[24:25], 1, v5")
    A("v_cmp_eq_u32 s[26:27], 2, v5")
    A("v_cmp_eq_u32 s[28:29], 3, v5")
    A("v_lshrrev_b32 v5, 2, v4")
    A("v_cmp_eq_u32 s[30:31], v5, v3")
    A(f"v_mov_b32 v44, {f32(1.0/448)}")
    Qr, Mr, O = 8, 16, 24
    for t in range(8):
        g = ACC + 4*t
        A(f"v_cndmask_b32 v{Qr+t}, v{g}, v{g+1}, s[24:25]")
        A(f"v_cndmask_b32 v{Qr+t}, v{Qr+t}, v{g+2}, s[26:27]")
        A(f"v_cndmask_b32 v{Qr+t}, v{Qr+t}, v{g+3}, s[28:29]")
        A(f"v_mul_f32 v{Mr+t}, v{ACC+32+4*t}, v44")
    for t in range(8):
        A(f"v_mul_f32 v{Qr+t}, v{Qr+t}, v44")
    for t in range(8):
        A(f"v_fma_f32 v{Qr+t}, -v{Mr+t}, v{Mr+t}, v{Qr+t}")
    for t in range(8):
        A(f"v_max_f32 v{Qr+t}, 0, v{Qr+t}")
    for t in range(8):
        round_bf16(A, Qr+t, Qr+t)
        round_bf16(A, Mr+t, Mr+t)
    for t in range(8):
        A(f"v_add_f32 v{Qr+t}, {f32(1e-5)}, v{Qr+t}")
    for t in range(8):
        round_bf16(A, Qr+t, Qr+t)
    for t in range(8):
        A(f"v_sqrt_f32 v{Qr+t}, v{Qr+t}")
    for t in range(8):
        round_bf16(A, Qr+t, Qr+t)
    for t in range(8):
        A(f"v_rcp_f32 v{O+2*t}, v{Qr+t}")
    for t in range(8):
        A(f"v_mul_f32 v{O+1+2*t}, v{O+2*t}, v{Mr+t}")
    A("v_lshlrev_b32 v5, 3, v4")
    A(f"v_add_u32 v5, {STATS}, v5")
    A("s_mov_b64 exec, s[30:31]")
    for t in range(8):
        A(f"ds_write_b64 v5, {vr(O+2*t,2)} offset:{128*t}")
    A("s_mov_b64 exec, -1")
    A("s_waitcnt lgkmcnt(0)")
    A("v_mov_b32 v2, 1")
    A(f"v_mov_b32 v5, {LFLAG}")
    A("ds_write_b32 v5, v2")
    stamp(A, 4)
    g2_prefetch()

    A.label("k34_sig")
    A("s_waitcnt vmcnt(0) lgkmcnt(0)")
    stamp(A, 5)
    A("s_barrier")
    A("s_lshl_b32 s15, s7, 8")
    A("s_cmp_lg_u32 s4, 0")
    A("s_cbranch_scc1 k34_wait_done")
    if PROF:
        A("s_memrealtime s[82:83]")
    A("s_mov_b64 exec, 1")
    A("v_mov_b32 v2, 1")
    A("buffer_atomic_add v2, off, s[72:75], s15 sc1")
    A("s_mov_b64 exec, -1")
    A("s_cmp_ge_u32 s8, 14")
    A("s_cbranch_scc1 k34_wait_done")
    A(f"s_mov_b32 s78, {SPIN_MAX}")
    A.label("k34_wait")
    A(f"buffer_load_dword v2, off, s[72:75], s15 sc1")
    A("s_waitcnt vmcnt(0)")
    A("v_readfirstlane_b32 s79, v2")
    A("s_cmp_ge_u32 s79, 16")
    A("s_cbranch_scc1 k34_wait_done")
    A("s_sub_u32 s78, s78, 1")
    A("s_cmp_eq_u32 s78, 0")
    A("s_cbranch_scc1 k34_wait_done")
    A(f"s_sleep {os.environ.get('SLP', '2')}")
    A("s_branch k34_wait")
    A.label("k34_wait_done")
    A("s_cmp_ge_u32 s8, 14")
    A("s_cbranch_scc1 k34_kernel_done")
    A("s_barrier")
    stamp(A, 6)
    if PROF:
        A("s_cmp_lg_u32 s4, 0")
        A("s_cbranch_scc1 k34_pr1")
        A("s_memrealtime s[92:93]")
        A.label("k34_pr1")
    A("s_lshl_b32 s22, s7, 3")
    A("s_lshl_b32 s23, s16, 2")
    A("s_add_u32 s22, s22, s23")
    A("s_mul_i32 s22, s22, 56")
    A("s_mul_i32 s23, s4, 7")
    A("s_add_u32 s22, s22, s23")
    A("s_lshl_b32 s22, s22, 10")
    for tt in range(4):
        A(f"s_add_u32 s{24+tt}, s22, {tt*57344}")
        A(f"s_add_u32 s{28+tt}, s22, {tt*57344 + 4096}")
    BB = 8
    NB = 3

    def ldB(k):
        for tt in range(4):
            A(f"buffer_load_dwordx4 {vr(BB+16*(k%NB)+4*tt,4)}, v250, s[60:63], s{(24 if k < 4 else 28)+tt} offen offset:{1024*(k%4)} sc1")
    for k in range(NB):
        ldB(k)
    for k in range(7):
        issued = min(7, k + NB)
        A(f"s_waitcnt vmcnt({4*(issued - k - 1)})")
        for tt in range(4):
            for jt in range(4):
                acc = ACC + 16*tt + 4*jt
                c = "0" if k == 0 else vr(acc, 4)
                A(f"v_mfma_f32_16x16x32_bf16 {vr(acc,4)}, {vr(WF+16*k+4*jt,4)}, {vr(BB+16*(k%NB)+4*tt,4)}, {c}")
        if k + NB < 7:
            ldB(k + NB)
    A("s_lshl_b32 s22, s4, 10")
    A("v_add_u32 v244, s22, v250")
    A("v_add_u32 v245, 0x10000, v244")
    for s_ in range(16):
        A(f"ds_write_b128 v{244 if s_ < 8 else 245}, {vr(ACC+4*s_,4)} offset:{(s_%8)*8192}")
    A("s_waitcnt lgkmcnt(0)")
    A("s_barrier")
    A("s_lshl_b32 s22, s4, 14")
    A("v_add_u32 v244, s22, v250")
    R = 56
    for h in range(2):
        for src in range(8):
            A(f"ds_read_b128 {vr(R+32*h+4*src,4)}, v244 offset:{h*8192 + src*1024}")
    srd(A, 48, P_OUT, 0, XT_SZ)
    A("v_mul_u32_u24 v246, 896, v4")
    A("v_lshl_add_u32 v246, v3, 5, v246")
    A("s_lshl_b32 s22, s7, 3")
    A("s_add_u32 s22, s22, s21")
    A(f"s_mul_i32 s22, s22, {16*896}")
    A("s_lshl_b32 s23, s18, 1")
    A("s_add_u32 s22, s22, s23")
    X2 = 8
    for j in range(4):
        unpack2(A, X2+2*j, X2+2*j+1, X2R+j)
    for h in range(2):
        A(f"s_waitcnt lgkmcnt({8*(1-h)})")
        b = R + 32*h
        for st in (4, 2, 1):
            for q in range(st):
                for p in range(2):
                    A(f"v_pk_add_f32 {vr(b+4*q+2*p,2)}, {vr(b+4*q+2*p,2)}, {vr(b+4*(q+st)+2*p,2)}")
    O = 16
    for h in range(2):
        for p in range(2):
            A(f"v_cvt_pk_bf16_f32 v{24+2*h+p}, v{R+32*h+2*p}, v{R+32*h+2*p+1}")
    for j in range(4):
        unpack2(A, O+2*j, O+2*j+1, 24+j)
    for p in range(4):
        A(f"v_pk_mul_f32 {vr(O+2*p,2)}, {vr(O+2*p,2)}, {vr(GBR+2*p,2)}")
    for j in range(4):
        A(f"v_cvt_pk_bf16_f32 v{24+j}, v{O+2*j}, v{O+2*j+1}")
    for j in range(4):
        unpack2(A, O+2*j, O+2*j+1, 24+j)
    for p in range(4):
        A(f"v_pk_add_f32 {vr(O+2*p,2)}, {vr(O+2*p,2)}, {vr(X2+2*p,2)}")
    for j in range(4):
        A(f"v_cvt_pk_bf16_f32 v{24+j}, v{O+2*j}, v{O+2*j+1}")
    A("buffer_store_dwordx4 v[24:27], v246, s[48:51], s22 offen")
    A.label("k34_kernel_done")
    finish(A, 2)
    A.label("k34_kernel_exit")
    A("s_endpgm")


K34 = ("k34_kernel", gen_k34, K34_NWG, 512, K34_LDS, 256, 0)
```

```python
from gen import *

N_LN, N_MOD, N_W2, N_CH, N_ST = 64, 84, 56, 448, 64
ST1_OFF = 0x10000
ST1_SZ = 2048 * 8
K12_NWG = N_LN + N_MOD + N_W2 + N_CH + N_ST
B_CH, B_MOD, B_ST, B_LN, B_W2 = 0, N_CH, N_CH + N_MOD, N_CH + N_MOD + N_ST, N_CH + N_MOD + N_ST + N_LN
N_A = N_LN + N_ST
CNT_LN, CNT_ST, CNT_B = 0, 32, 64
FLAGS = 128
FLAG_OF = {CNT_LN: FLAGS, CNT_ST: FLAGS + 4, CNT_B: FLAGS + 8}
SPIN_MAX = 1 << 22
SYNC_OFF, SYNC_SZ = 0x8000, 4096

HB = 0
S3B, S3P = 5184, 648
H2B, H2P = 10080, 320
S5B, S5P = 14320, 640
S7B, S7P = 18688, 520
S9B, S9P = 21792, 512
WB, WP = 24880, 8
Y0B = 26960
Y1B = Y0B + 8448
Y2B = S5B
Y3B = S5B + 6144
assert Y3B + 4096 <= WB
CH_LDS = Y1B + 7168
KG_RS = 272
KG_WV = 32 * KG_RS
KG_PART = 0
KG_IMG = 12288
KG_TAPC = 16896
KG_K1024 = 25856
K12_LDS = 46080
assert CH_LDS <= K12_LDS


def dbg_srd(A, sd):
    srd(A, sd, P_DBG, 0, 256)


def signal(A, sd, cnt, total, tag, chain=None):
    A("s_waitcnt vmcnt(0)")
    A("s_barrier")
    A("s_cmp_lg_u32 s4, 0")
    A(f"s_cbranch_scc1 sig_{tag}")
    A("s_mov_b64 exec, 1")
    for i, (o, n) in enumerate([(cnt, total)] + ([chain] if chain else [])):
        A("v_mov_b32 v2, 1")
        A(f"buffer_atomic_add v2, off, s[{sd}:{sd+3}], 0 offset:{o} sc0 sc1")
        A("s_waitcnt vmcnt(0)")
        A("v_readfirstlane_b32 s79, v2")
        A(f"s_cmp_lg_u32 s79, {n-1}")
        A(f"s_cbranch_scc1 sig_{tag}_x")
        A("v_mov_b32 v2, 1")
        A(f"buffer_store_dword v2, off, s[{sd}:{sd+3}], 0 offset:{FLAG_OF[o]} sc1")
    A.label(f"sig_{tag}_x")
    A("s_mov_b64 exec, -1")
    A.label(f"sig_{tag}")


def wait_cnt(A, sd, off, tag, sleep=8, both=False):
    A("s_cmp_lg_u32 s4, 0")
    A(f"s_cbranch_scc1 wt_{tag}_done")
    A(f"s_mov_b32 s78, {SPIN_MAX}")
    A.label(f"wt_{tag}_loop")
    if both:
        A(f"buffer_load_dwordx4 v[156:159], off, s[{sd}:{sd+3}], 0 offset:{FLAGS} sc1")
        A("s_waitcnt vmcnt(0)")
        A("v_and_b32 v2, v156, v157")
        A("v_and_b32 v2, v2, v158")
    else:
        A(f"buffer_load_dword v2, off, s[{sd}:{sd+3}], 0 offset:{FLAG_OF[off]} sc1")
        A("s_waitcnt vmcnt(0)")
    A("v_readfirstlane_b32 s79, v2")
    A("s_cmp_lg_u32 s79, 0")
    A(f"s_cbranch_scc1 wt_{tag}_done")
    A("s_sub_u32 s78, s78, 1")
    A("s_cmp_eq_u32 s78, 0")
    A(f"s_cbranch_scc1 wt_{tag}_done")
    A(f"s_sleep {sleep}")
    A(f"s_branch wt_{tag}_loop")
    A.label(f"wt_{tag}_done")
    A("s_barrier")


def r_ln(A):
    NR = 8
    RS = 912
    A.label("k12_ln")
    A("s_setprio 3")
    A(f"s_sub_u32 s13, s2, {B_LN}")
    A("s_lshl_b32 s5, s13, 5")
    srd(A, 48, P_U, 0, XT_SZ)
    srd(A, 52, P_WS, ST1_OFF, ST1_SZ)
    srd(A, 56, P_WS, XT_OFF, XT_SZ)
    dbg_srd(A, 72)
    A("s_lshl_b32 s12, s4, 3")
    A("s_add_u32 s12, s12, s5")
    A("s_mul_i32 s6, s12, 896")
    A("s_add_u32 s7, s6, 3584")
    A("v_lshlrev_b32 v3, 4, v1")
    A("v_mov_b32 v4, 0x7ffffff0")
    A("v_cmp_gt_u32 vcc, 56, v1")
    A("v_cndmask_b32 v4, v4, v3, vcc")
    XP, XU = 8, 40
    for r in range(NR):
        A(f"buffer_load_dwordx4 {vr(XP+4*r,4)}, v4, s[48:51], s{6 if r < 4 else 7} offen offset:{(r%4)*896}")
    A(f"s_mul_i32 s8, s4, {8*RS}")
    A("v_add_u32 v5, s8, v3")
    A("v_lshrrev_b32 v6, 4, v1")
    A("v_bfe_u32 v7, v1, 2, 2")
    A("v_lshl_add_u32 v7, v6, 3, v7")
    A(f"v_mul_u32_u24 v7, {RS}, v7")
    A("v_and_b32 v104, 3, v1")
    A("v_lshl_add_u32 v7, v104, 3, v7")
    A("s_lshl_b32 s9, s4, 5")
    A("v_add_u32 v7, s9, v7")
    A("v_and_b32 v104, 15, v1")
    A("s_lshl_b32 s9, s4, 4")
    A("v_add_u32 v104, s9, v104")
    A("v_lshlrev_b32 v104, 12, v104")
    A("v_lshl_add_u32 v6, v6, 4, v104")
    A("s_lshl_b32 s11, s5, 1")
    A(f"v_mov_b32 v158, {f32(1.0/448)}")
    A("s_mov_b32 exec_hi, 0x00ffffff")
    for r in range(NR):
        A(f"s_waitcnt vmcnt({NR-1-r})")
        A(f"ds_write_b128 v5, {vr(XP+4*r,4)} offset:{r*RS}")
    A("s_mov_b32 exec_hi, -1")
    stamp(A, 1)
    A("s_waitcnt lgkmcnt(0)")
    A("s_barrier")
    T = 104
    for i in range(7):
        for hf in range(2):
            A(f"ds_read_b64_tr_b16 {vr(T+4*i+2*hf,2)}, v7 offset:{hf*4*RS + i*128}")
    for i in range(7):
        A(f"s_waitcnt lgkmcnt({2*(6-i)})")
        A(f"buffer_store_dwordx4 {vr(T+4*i,4)}, v6, s[56:59], s11 offen sc1")
        if i < 6:
            A("s_add_u32 s11, s11, 0x40000")
    stamp(A, 2)
    signal(A, 72, CNT_LN, N_LN, "lnA")
    stamp(A, 4)
    A("s_setprio 0")
    A("s_mov_b32 s5, s13")
    A("s_branch k12_wprep")


def r_stats(A):
    NR = 8
    A.label("k12_st")
    A("s_setprio 3")
    A(f"s_sub_u32 s13, s2, {B_ST}")
    A("s_lshl_b32 s5, s13, 5")
    srd(A, 48, P_U, 0, XT_SZ)
    srd(A, 52, P_WS, ST1_OFF, ST1_SZ)
    dbg_srd(A, 72)
    A("s_lshl_b32 s12, s4, 3")
    A("s_add_u32 s12, s12, s5")
    A("s_mul_i32 s6, s12, 896")
    A("s_add_u32 s7, s6, 3584")
    A("v_lshlrev_b32 v3, 4, v1")
    A("v_mov_b32 v4, 0x7ffffff0")
    A("v_cmp_gt_u32 vcc, 56, v1")
    A("v_cndmask_b32 v4, v4, v3, vcc")
    XP, XU = 8, 40
    for r in range(NR):
        A(f"buffer_load_dwordx4 {vr(XP+4*r,4)}, v4, s[48:51], s{6 if r < 4 else 7} offen offset:{(r%4)*896}")
    A(f"v_mov_b32 v158, {f32(1.0/448)}")
    A("s_waitcnt vmcnt(0)")
    stamp(A, 1)
    S, M, R2 = 8, 132, 148
    for r in range(NR):
        for j in range(4):
            unpack2(A, XU+8*r+2*j, XU+8*r+2*j+1, XP+4*r+j)
    for r in range(NR):
        b = XU + 8*r
        A(f"v_pk_add_f32 {vr(M+2*r,2)}, {vr(b,2)}, {vr(b+2,2)}")
        A(f"v_pk_add_f32 {vr(16+2*r,2)}, {vr(b+4,2)}, {vr(b+6,2)}")
    for r in range(NR):
        A(f"v_pk_add_f32 {vr(M+2*r,2)}, {vr(M+2*r,2)}, {vr(16+2*r,2)}")
    for r in range(NR):
        A(f"v_add_f32 v{S+r}, v{M+2*r}, v{M+2*r+1}")
    dpp_reduce(A, [S+r for r in range(NR)])
    for r in range(NR):
        A(f"v_readlane_b32 s{60+r}, v{S+r}, 63")
    for r in range(NR):
        A(f"v_mul_f32 v{M+2*r}, s{60+r}, v158")
    for r in range(NR):
        b = XU + 8*r
        for j in range(4):
            A(f"v_pk_add_f32 {vr(b+2*j,2)}, {vr(b+2*j,2)}, {vr(M+2*r,2)} op_sel_hi:[1,0] neg_lo:[0,1] neg_hi:[0,1]")
    for r in range(NR):
        b = XU + 8*r
        A(f"v_pk_mul_f32 {vr(16+2*r,2)}, {vr(b,2)}, {vr(b,2)}")
    for j in range(1, 4):
        for r in range(NR):
            b = XU + 8*r
            A(f"v_pk_fma_f32 {vr(16+2*r,2)}, {vr(b+2*j,2)}, {vr(b+2*j,2)}, {vr(16+2*r,2)}")
    for r in range(NR):
        A(f"v_add_f32 v{S+r}, v{16+2*r}, v{17+2*r}")
    for r in range(NR):
        A(f"v_cndmask_b32 v{S+r}, 0, v{S+r}, vcc")
    dpp_reduce(A, [S+r for r in range(NR)])
    for r in range(NR):
        A(f"v_readlane_b32 s{60+r}, v{S+r}, 63")
    for r in range(NR):
        A(f"v_mul_f32 v{M+2*r+1}, s{60+r}, v158")
    for r in range(NR):
        round_bf16(A, M+2*r, M+2*r)
        round_bf16(A, M+2*r+1, M+2*r+1)
    for r in range(NR):
        A(f"v_add_f32 v{M+2*r+1}, {f32(1e-5)}, v{M+2*r+1}")
    for r in range(NR):
        round_bf16(A, M+2*r+1, M+2*r+1)
    for r in range(NR):
        A(f"v_sqrt_f32 v{M+2*r+1}, v{M+2*r+1}")
    for r in range(NR):
        round_bf16(A, M+2*r+1, M+2*r+1)
    for r in range(NR):
        A(f"v_rcp_f32 v{M+2*r+1}, v{M+2*r+1}")
    A("s_lshl_b32 s7, s12, 3")
    A("s_mov_b64 exec, 1")
    for q in range(4):
        A(f"buffer_store_dwordx4 {vr(M+4*q,4)}, off, s[52:55], s7 offset:{16*q} sc1")
    A("s_mov_b64 exec, -1")
    stamp(A, 3)
    signal(A, 72, CNT_ST, N_ST, "stA")
    finish(A, 0)


def r_mod(A):
    A.label("k12_mod")
    A("s_setprio 3")
    A(f"s_sub_u32 s5, s2, {B_MOD}")
    srd(A, 48, P_WMOD, 0, 448 * 5376)
    srd(A, 52, P_C, 0, 896)
    srd(A, 56, P_WS, MOD_OFF, MOD_SZ)
    dbg_srd(A, 72)
    A("v_lshrrev_b32 v3, 2, v0")
    A("v_and_b32 v4, 3, v0")
    A(f"s_mov_b32 s6, {7*5376}")
    A("v_mul_lo_u32 v5, v3, s6")
    A("v_lshl_add_u32 v5, v4, 4, v5")
    A("s_lshl_b32 s7, s5, 6")
    A("v_mul_u32_u24 v6, 14, v3")
    for j in range(7):
        A(f"buffer_load_ushort v{8+j}, v6, s[52:55], 0 offen offset:{2*j}")
    W = 16
    for s in range(7):
        A(f"buffer_load_dwordx4 {vr(W+4*s,4)}, v5, s[48:51], s7 offen")
        if s < 6:
            A("s_add_u32 s7, s7, 5376")
    A("s_waitcnt vmcnt(7)")
    stamp(A, 1)
    C = 72
    for j in range(7):
        A(f"v_lshlrev_b32 v{C+2*j}, 16, v{8+j}")
    NS = 7
    for s in range(NS):
        A(f"v_mul_f32 v{C+2*s+1}, {f32(-LOG2E)}, v{C+2*s}")
    for s in range(NS):
        A(f"v_exp_f32 v{C+2*s+1}, v{C+2*s+1}")
    for s in range(NS):
        A(f"v_add_f32 v{C+2*s+1}, 1.0, v{C+2*s+1}")
    for s in range(NS):
        A(f"v_rcp_f32 v{112+s}, v{C+2*s+1}")
    for s in range(NS):
        A(f"v_mul_f32 v{128+s}, v{C+2*s}, v{112+s}")
    for s in range(NS):
        A(f"v_fma_f32 v{C+2*s}, -v{128+s}, v{C+2*s+1}, v{C+2*s}")
    for s in range(NS):
        A(f"v_fma_f32 v{C+2*s}, v{C+2*s}, v{112+s}, v{128+s}")
    for s in range(NS):
        round_bf16(A, C+2*s, C+2*s)
    ACC, T = 104, 112
    for s in range(NS):
        A(f"s_waitcnt vmcnt({NS-1-s})")
        for j in range(4):
            unpack2(A, T+2*j, T+2*j+1, W+4*s+j)
        for j in range(4):
            if s == 0:
                A(f"v_pk_mul_f32 {vr(ACC+2*j,2)}, {vr(T+2*j,2)}, {vr(C+2*s,2)} op_sel_hi:[1,0]")
            else:
                A(f"v_pk_fma_f32 {vr(ACC+2*j,2)}, {vr(T+2*j,2)}, {vr(C+2*s,2)}, {vr(ACC+2*j,2)} op_sel_hi:[1,0,1]")
    stamp(A, 2)
    for mod in ("row_shr:4", "row_shr:8"):
        for j in range(8):
            A(f"v_add_f32_dpp v{ACC+j}, v{ACC+j}, v{ACC+j} {mod} row_mask:0xf bank_mask:0xf bound_ctrl:0")
    A("v_lshrrev_b32 v8, 4, v0")
    A("v_lshl_add_u32 v8, v8, 2, v4")
    A("v_lshlrev_b32 v8, 5, v8")
    A("s_mov_b32 exec_lo, 0xf000f000")
    A("s_mov_b32 exec_hi, 0xf000f000")
    for j in range(2):
        A(f"ds_write_b128 v8, {vr(ACC+4*j,4)} offset:{16*j}")
    A("s_mov_b64 exec, -1")
    A("s_waitcnt lgkmcnt(0)")
    A("s_barrier")
    A("s_cmp_lg_u32 s4, 0")
    A("s_cbranch_scc1 k12_mod_sig")
    A("v_and_b32 v9, 31, v1")
    A("v_lshlrev_b32 v10, 2, v9")
    A("v_lshrrev_b32 v11, 5, v1")
    A("v_lshl_add_u32 v11, v11, 10, v10")
    for p in range(8):
        A(f"ds_read_b32 v{16+p}, v11 offset:{128*p}")
    A("s_lshl_b32 s7, s5, 7")
    A("s_waitcnt lgkmcnt(0)")
    for st in (4, 2, 1):
        for j in range(st):
            A(f"v_add_f32 v{16+j}, v{16+j}, v{16+st+j}")
    A("v_mov_b32 v17, v16")
    A("v_permlane32_swap_b32 v16, v17")
    A("v_add_f32 v16, v16, v17")
    round_bf16(A, 8, 16)
    A("s_mov_b32 exec_hi, 0")
    A("buffer_store_dword v8, v10, s[56:59], s7 offen sc1")
    A("s_mov_b64 exec, -1")
    A.label("k12_mod_sig")
    stamp(A, 3)
    signal(A, 72, CNT_B, N_MOD, "mod")
    finish(A, 0)


def r_w2(A):
    A.label("k12_w2")
    A(f"s_sub_u32 s5, s2, {B_W2}")
    srd(A, 48, P_W2, 0, F * D * 2)
    srd(A, 52, P_WS, W2F_OFF, W2F_SZ)
    dbg_srd(A, 72)
    A("v_lshlrev_b32 v3, 4, v1")
    A("s_cmp_lg_u32 s5, 0")
    A("s_cbranch_scc1 k12_w2_nz")
    srd(A, 56, P_WS, SYNC_OFF, SYNC_SZ)
    for j in range(4):
        A(f"v_mov_b32 v{8+j}, 0")
    A("v_lshlrev_b32 v4, 4, v0")
    A("buffer_store_dwordx4 v[8:11], v4, s[56:59], 0 offen")
    A.label("k12_w2_nz")
    A("s_mul_i32 s6, s5, 28672")
    A("s_lshl_b32 s7, s4, 10")
    A("s_add_u32 s6, s6, s7")
    for i in range(7):
        A("s_mov_b32 m0, s7")
        A("buffer_load_dwordx4 v3, s[48:51], s6 offen lds")
        if i < 6:
            A("s_add_u32 s6, s6, 4096")
            A("s_add_u32 s7, s7, 4096")
    A("v_lshrrev_b32 v4, 4, v1")
    A("v_bfe_u32 v5, v1, 2, 2")
    A("v_lshl_add_u32 v4, v4, 3, v5")
    A("v_mul_u32_u24 v4, 896, v4")
    A("v_and_b32 v5, 3, v1")
    A("v_lshl_add_u32 v4, v5, 5, v4")
    A("s_lshl_b32 s8, s4, 3")
    A("v_add_u32 v4, s8, v4")
    A("s_lshl_b32 s9, s5, 2")
    A("s_add_u32 s9, s9, s4")
    A("s_lshl_b32 s9, s9, 10")
    A("s_waitcnt vmcnt(0)")
    A("s_barrier")
    T = 8
    for d4 in range(7):
        for hf in range(2):
            A(f"ds_read_b64_tr_b16 {vr(T+4*d4+2*hf,2)}, v4 offset:{hf*4*896 + d4*128}")
    for d4 in range(7):
        A(f"s_waitcnt lgkmcnt({2*(6-d4)})")
        A(f"buffer_store_dwordx4 {vr(T+4*d4,4)}, v3, s[52:55], s9 offen")
        if d4 < 6:
            A(f"s_add_u32 s9, s9, {56*4*1024}")
    stamp(A, 4)
    A("s_cmp_ge_u32 s5, 48")
    A("s_cbranch_scc1 k12_kernel_done")
    A("s_add_u32 s5, s5, 64")
    A("s_barrier")


def r_wprep(A):
    RS = 80
    RED = 448 * RS
    A.label("k12_wprep")
    A("s_lshr_b32 s6, s5, 1")
    A("s_and_b32 s5, s5, 1")
    A("s_cmp_eq_u32 s5, 0")
    A("s_cselect_b32 s48, s32, s34")
    A("s_cselect_b32 s49, s33, s35")
    A(f"s_mov_b32 s50, {D*F*2}")
    A("s_mov_b32 s51, 0x20000")
    srd(A, 52, P_WS, MOD_OFF, MOD_SZ)
    srd(A, 56, P_WS, W1F_OFF, W1F_SZ)
    srd(A, 60, P_WS, SB_OFF, SB_SZ)
    A("v_lshrrev_b32 v3, 2, v0")
    A("v_and_b32 v4, 3, v0")
    A(f"s_mov_b32 s7, {7*3584}")
    A("v_mul_lo_u32 v5, v3, s7")
    A("v_lshl_add_u32 v5, v4, 4, v5")
    A("v_mul_u32_u24 v6, 28, v3")
    A("s_lshl_b32 s8, s6, 6")
    W = 40
    for s in range(7):
        A(f"buffer_load_dwordx4 {vr(W+4*s,4)}, v5, s[48:51], s8 offen")
        if s < 6:
            A("s_add_u32 s8, s8, 3584")
    wait_cnt(A, 72, CNT_B, "wp", 12)
    A("s_mov_b32 s70, 5376")
    A("s_mov_b32 s71, 7168")
    for j in range(2):
        A(f"buffer_load_dwordx4 {vr(8+4*j,4)}, v6, s[52:55], s70 offen offset:{16*j} sc1")
    for j in range(2):
        A(f"buffer_load_dwordx4 {vr(16+4*j,4)}, v6, s[52:55], s71 offen offset:{16*j} sc1")
    A(f"v_mul_u32_u24 v102, {7*RS}, v3")
    A("v_lshl_add_u32 v102, v4, 4, v102")
    A("s_waitcnt vmcnt(0)")
    stamp(A, 5)
    C1, SBR = 72, 86
    for s in range(7):
        A(f"v_add_f32 v{C1+2*s}, 1.0, v{16+s}")
    for s in range(7):
        round_bf16(A, C1+2*s, C1+2*s)
    for s in range(7):
        A(f"v_mov_b32 v{SBR+2*s}, v{8+s}")
    AB, AS, T, T2 = 104, 112, 120, 128
    for s in range(7):
        for j in range(4):
            unpack2(A, T+2*j, T+2*j+1, W+4*s+j)
        for j in range(4):
            A(f"v_pk_mul_f32 {vr(T2+2*j,2)}, {vr(T+2*j,2)}, {vr(C1+2*s,2)} op_sel_hi:[1,0]")
        for j in range(4):
            if s == 0:
                A(f"v_pk_mul_f32 {vr(AB+2*j,2)}, {vr(T+2*j,2)}, {vr(SBR+2*s,2)} op_sel_hi:[1,0]")
            else:
                A(f"v_pk_fma_f32 {vr(AB+2*j,2)}, {vr(T+2*j,2)}, {vr(SBR+2*s,2)}, {vr(AB+2*j,2)} op_sel_hi:[1,0,1]")
        for j in range(4):
            A(f"v_cvt_pk_bf16_f32 v{W+4*s+j}, v{T2+2*j}, v{T2+2*j+1}")
        A(f"ds_write_b128 v102, {vr(W+4*s,4)} offset:{s*RS}")
        if s == 0:
            for j in range(4):
                unpack2(A, AS+2*j, AS+2*j+1, W+4*s+j)
        else:
            for j in range(4):
                unpack2(A, T+2*j, T+2*j+1, W+4*s+j)
            for j in range(4):
                A(f"v_pk_add_f32 {vr(AS+2*j,2)}, {vr(AS+2*j,2)}, {vr(T+2*j,2)}")
    for mod in ("row_shr:4", "row_shr:8"):
        for j in range(16):
            A(f"v_add_f32_dpp v{AB+j}, v{AB+j}, v{AB+j} {mod} row_mask:0xf bank_mask:0xf bound_ctrl:0")
    A("v_lshrrev_b32 v8, 4, v0")
    A("v_lshl_add_u32 v8, v8, 2, v4")
    A("v_lshlrev_b32 v8, 6, v8")
    A(f"v_add_u32 v8, {RED}, v8")
    A("s_mov_b32 exec_lo, 0xf000f000")
    A("s_mov_b32 exec_hi, 0xf000f000")
    for j in range(4):
        A(f"ds_write_b128 v8, {vr(AB+4*j,4)} offset:{16*j}")
    A("s_mov_b64 exec, -1")
    A("s_waitcnt lgkmcnt(0)")
    A("s_barrier")
    A("v_lshrrev_b32 v8, 2, v1")
    A(f"v_mul_u32_u24 v8, {RS}, v8")
    A("v_and_b32 v9, 3, v1")
    A("v_lshl_add_u32 v8, v9, 3, v8")
    A("s_and_b32 s9, s4, 1")
    A("s_lshr_b32 s10, s4, 1")
    A("s_lshl_b32 s11, s9, 5")
    A(f"s_mul_i32 s12, s10, {7*32*RS}")
    A("s_add_u32 s11, s11, s12")
    A("v_add_u32 v8, s11, v8")
    FR = 16
    for k in range(7):
        for hf in range(2):
            A(f"ds_read_b64_tr_b16 {vr(FR+4*k+2*hf,2)}, v8 offset:{(32*k + 16*hf)*RS}")
    A("v_and_b32 v10, 31, v1")
    A("v_lshrrev_b32 v11, 3, v10")
    A("v_lshlrev_b32 v11, 6, v11")
    A("v_and_b32 v12, 7, v10")
    A("v_lshl_add_u32 v11, v12, 2, v11")
    A("v_lshrrev_b32 v12, 5, v1")
    A("v_lshl_add_u32 v11, v12, 5, v11")
    A(f"v_add_u32 v11, {RED}, v11")
    for p in range(16):
        A(f"ds_read_b32 v{48+p}, v11 offset:{256*p}")
    A("s_lshl_b32 s13, s6, 1")
    A("s_add_u32 s13, s13, s9")
    A("s_mul_i32 s14, s13, 14")
    A("s_mul_i32 s15, s10, 7")
    A("s_add_u32 s14, s14, s15")
    A("s_lshl_b32 s14, s14, 1")
    A("s_add_u32 s14, s14, s5")
    A("s_lshl_b32 s14, s14, 10")
    A("v_lshlrev_b32 v13, 4, v1")
    A("s_waitcnt lgkmcnt(0)")
    for k in range(7):
        A(f"buffer_store_dwordx4 {vr(FR+4*k,4)}, v13, s[56:59], s14 offen offset:{2048*(k%2)}")
        if k % 2 == 1:
            A("s_add_u32 s14, s14, 4096")
    A("s_cmp_lg_u32 s4, 0")
    A("s_cbranch_scc1 k12_kernel_done")
    for st in (8, 4, 2, 1):
        for j in range(st):
            A(f"v_add_f32 v{48+j}, v{48+j}, v{48+st+j}")
    A("v_sub_u32 v12, 1, v12")
    A(f"v_mul_u32_u24 v12, {F*4}, v12")
    A("v_lshl_add_u32 v12, v10, 2, v12")
    A(f"s_mul_i32 s12, s5, {2*F*4}")
    A("s_lshl_b32 s13, s6, 7")
    A("s_add_u32 s12, s12, s13")
    A("buffer_store_dword v48, v12, s[60:63], s12 offen")
    finish(A, 0)


def r_chan(A):
    A.label("k12_chan")
    A("s_mov_b32 s5, s2")
    srd(A, 48, P_LAR, 0, D * N * 2)
    srd(A, 52, P_AIM, 0, D * N * 2)
    srd(A, 56, P_CR, 0, D * N * 2)
    srd(A, 60, P_CI, 0, D * N * 2)
    srd(A, 64, P_LDT, 0, D * 2)
    srd(A, 68, P_DSK, 0, D * 2)
    dbg_srd(A, 72)
    A("s_lshl_b32 s6, s5, 9")
    A("s_lshl_b32 s7, s5, 1")
    A("v_lshlrev_b32 v3, 1, v0")
    A("buffer_load_ushort v4, v3, s[48:51], s6 offen")
    A("buffer_load_ushort v5, v3, s[52:55], s6 offen")
    A("buffer_load_ushort v6, v3, s[56:59], s6 offen")
    A("buffer_load_ushort v7, v3, s[60:63], s6 offen")
    A("buffer_load_ushort v8, off, s[64:67], s7")
    A("buffer_load_ushort v160, off, s[68:71], s7")
    A("v_lshlrev_b32 v9, 4, v0")
    A("v_and_b32 v16, 15, v1")
    A("v_lshrrev_b32 v17, 4, v1")
    A("v_and_b32 v18, 1, v17")
    A("v_lshrrev_b32 v19, 1, v17")
    A("v_lshlrev_b32 v28, 3, v16")
    A("v_lshl_add_u32 v28, v18, 2, v28")
    A("v_lshl_add_u32 v28, v19, 7, v28")
    A("v_sub_u32 v28, 284, v28")
    A("v_lshlrev_b32 v28, 2, v28")
    A("v_lshlrev_b32 v18, 5, v17")
    A("v_lshl_add_u32 v19, v16, 1, v18")
    A("v_sub_u32 v19, 415, v19")
    A("v_add_u32 v21, v16, v18")
    A("v_sub_u32 v21, 735, v21")
    A("v_cmp_gt_u32 vcc, 2, v17")
    A("v_cndmask_b32 v29, v21, v19, vcc")
    A("v_mov_b32 v19, 16")
    A("v_cndmask_b32 v30, v19, 1, vcc")
    A("v_sub_u32 v30, v29, v30")
    A("v_lshlrev_b32 v29, 2, v29")
    A("v_lshlrev_b32 v30, 2, v30")
    A("v_and_b32 v19, 1, v16")
    A("v_lshlrev_b32 v19, 7, v19")
    A("v_lshrrev_b32 v21, 1, v16")
    A("v_add_u32 v21, v21, v18")
    A("v_sub_u32 v31, v19, v21")
    A("v_add_u32 v31, 903, v31")
    A("v_lshlrev_b32 v31, 2, v31")
    A(f"s_mul_i32 s8, s4, {KG_WV}")
    A("v_lshlrev_b32 v32, 2, v1")
    A("v_add_u32 v32, s8, v32")
    A(f"v_mul_u32_u24 v33, {KG_RS}, v16")
    A("v_lshl_add_u32 v33, v17, 4, v33")
    A("v_add_u32 v33, s8, v33")
    A("s_waitcnt vmcnt(0)")
    stamp(A, 1)
    for r in (4, 5, 6, 7, 8):
        A(f"v_lshlrev_b32 v{r}, 16, v{r}")
    A(f"v_mul_f32 v8, {f32(LOG2E)}, v8")
    A(f"v_mul_f32 v4, {f32(LOG2E)}, v4")
    A("v_exp_f32 v8, v8")
    A("v_exp_f32 v4, v4")
    round_bf16(A, 8, 8)
    round_bf16(A, 4, 4)
    A("v_mul_f32 v12, v4, v8")
    A(f"v_mul_f32 v12, {f32(-LOG2E)}, v12")
    A("v_mul_f32 v13, v5, v8")
    A(f"v_mul_f32 v13, {f32(1.0/(2*math.pi))}, v13")
    A("v_mul_f32 v14, v6, v8")
    A("v_add_f32 v14, v14, v14")
    A("v_mul_f32 v15, v7, v8")
    A("v_add_f32 v15, v15, v15")
    pool = list(range(36, 104, 2))
    val = {}

    def alloc(name):
        val[name] = pool.pop(0)
        return val[name]

    def free(name):
        pool.append(val.pop(name))

    def direct(name, p):
        r = alloc(name)
        A(f"v_mul_f32 v{r}, {f32(float(p))}, v12")
        A(f"v_mul_f32 v{r+1}, {f32(float(p))}, v13")
        A(f"v_fract_f32 v{r+1}, v{r+1}")
        A(f"v_exp_f32 v34, v{r}")
        A(f"v_cos_f32 v{r}, v{r+1}")
        A(f"v_sin_f32 v{r+1}, v{r+1}")
        A(f"v_mul_f32 v{r}, v{r}, v34")
        A(f"v_mul_f32 v{r+1}, v{r+1}, v34")

    def cmul(name, x, y):
        a_, b_ = val[x], val[y]
        r = alloc(name)
        A(f"v_pk_mul_f32 {vr(r,2)}, {vr(b_,2)}, {vr(a_,2)} op_sel_hi:[1,0]")
        A(f"v_fma_f32 v{r}, -v{a_+1}, v{b_+1}, v{r}")
        A(f"v_fma_f32 v{r+1}, v{a_+1}, v{b_}, v{r+1}")

    tmpc = [20, 21, 22, 23]
    cnt = [0]

    def emit(name, row, conj=False):
        r = val[name]
        t = tmpc[cnt[0] % 4]
        cnt[0] += 1
        A(f"v_cvt_pk_bf16_f32 v{t}, v{r}, {'-' if conj else ''}v{r+1}")
        A(f"ds_write_b32 v32, v{t} offset:{row*KG_RS}")

    direct("1", 1)
    direct("8", 8)
    direct("128", 128)
    val["y0"] = 14
    emit("y0", 0, True)
    prev = "y0"
    A(f"v_mov_b32 v24, 0x00003f80")
    A(f"ds_write_b32 v32, v24 offset:{16*KG_RS}")
    emit("1", 17)
    emit("128", 24)
    xs = []
    for e in range(2, 8):
        xs.append(("m", str(e), str(e-1), "1", 16 + e))
    for e in range(1, 8):
        xs.append(("m", f"a{e}", str(e), "128", 24 + e))
    for b in range(1, 16):
        cmul(f"y{b}", prev, "8")
        if prev != "y0":
            free(prev)
        prev = f"y{b}"
        emit(prev, b, True)
        if xs:
            _, nm, x, y, row = xs.pop(0)
            cmul(nm, x, y)
            emit(nm, row)
            if nm.startswith("a"):
                free(nm)
    free(prev)
    del val["y0"]
    assert not xs
    for nm in ("3", "5", "7", "8", "1"):
        free(nm)
    YF, XF, ACC = 104, 120, 136
    A("s_waitcnt lgkmcnt(0)")
    for s_ in range(4):
        A(f"ds_read_b128 {vr(YF+4*s_,4)}, v33 offset:{64*s_}")
    for s_ in range(4):
        A(f"ds_read_b128 {vr(XF+4*s_,4)}, v33 offset:{16*KG_RS + 64*s_}")
    cmul("256", "128", "128")
    cmul("384", "256", "128")
    cmul("512", "256", "256")
    t1 = {}
    for base, r0 in (("256", 0), ("384", 4)):
        t1[r0] = base
        for j, e in enumerate(("2", "4", "6")):
            cmul(f"{base}+{e}", base, e)
            t1[r0 + 1 + j] = f"{base}+{e}"
    cmul("640", "512", "128")
    cmul("768", "512", "256")
    cmul("896", "512", "384")
    for j, base in enumerate(("512", "640", "768", "896")):
        t1[8 + 2*j] = base
        cmul(f"{base}+4", base, "4")
        t1[9 + 2*j] = f"{base}+4"
    A("s_waitcnt lgkmcnt(0)")
    for s_ in range(4):
        c = "0" if s_ == 0 else vr(ACC, 4)
        A(f"v_mfma_f32_16x16x32_bf16 {vr(ACC,4)}, {vr(XF+4*s_,4)}, {vr(YF+4*s_,4)}, {c}")
    for r in range(16):
        emit(t1[r], 16 + r)
    for r in range(16):
        if t1[r] not in ("512",):
            free(t1[r])
    for nm in ("2", "4", "6"):
        free(nm)
    A("s_waitcnt lgkmcnt(0)")
    for s_ in range(4):
        A(f"ds_read_b128 {vr(XF+4*s_,4)}, v33 offset:{16*KG_RS + 64*s_}")
    cmul("1024", "512", "512")
    t2 = ["1024"]
    for a_ in range(1, 8):
        cmul(f"t{a_}", t2[-1], "128")
        t2.append(f"t{a_}")
    cmul("2048", "1024", "1024")
    t2.append("2048")
    A("s_waitcnt lgkmcnt(0)")
    for s_ in range(4):
        c = "0" if s_ == 0 else vr(ACC+4, 4)
        A(f"v_mfma_f32_16x16x32_bf16 {vr(ACC+4,4)}, {vr(XF+4*s_,4)}, {vr(YF+4*s_,4)}, {c}")
    for r in range(9):
        emit(t2[r], 16 + r)
    A("s_waitcnt lgkmcnt(0)")
    for s_ in range(4):
        A(f"ds_read_b128 {vr(XF+4*s_,4)}, v33 offset:{16*KG_RS + 64*s_}")
    for j in range(4):
        A(f"v_mov_b32 v{12+j}, 0")
    A("s_waitcnt lgkmcnt(0)")
    for s_ in range(4):
        c = "0" if s_ == 0 else vr(ACC+8, 4)
        A(f"v_mfma_f32_16x16x32_bf16 {vr(ACC+8,4)}, {vr(XF+4*s_,4)}, {vr(YF+4*s_,4)}, {c}")
    stamp(A, 2)
    A("s_barrier")
    A("v_lshlrev_b32 v34, 4, v1")
    A("s_lshl_b32 s8, s4, 10")
    A("v_add_u32 v35, s8, v34")
    for T in range(3):
        A(f"ds_write_b128 v35, {vr(ACC+4*T,4)} offset:{KG_PART + 4096*T}")
    A(f"ds_write_b128 v9, v[12:15] offset:{KG_IMG}")
    A("v_min_u32 v10, 19, v1")
    A("v_lshlrev_b32 v10, 4, v10")
    A(f"ds_write_b128 v10, v[12:15] offset:{KG_IMG+4096}")
    A("s_waitcnt lgkmcnt(0)")
    A("s_barrier")
    A("s_cmp_eq_u32 s4, 3")
    A("s_cbranch_scc1 k12c_sc_done")
    A("s_lshl_b32 s9, s4, 12")
    A("v_add_u32 v35, s9, v34")
    for w in range(4):
        A(f"ds_read_b128 {vr(36+4*w,4)}, v35 offset:{KG_PART + 1024*w}")
    A("v_mov_b32 v35, 0")
    for w in range(4):
        A(f"ds_read_b32 v{52+w}, v35 offset:{KG_PART + 4096 + 1024*w}")
    A("s_waitcnt lgkmcnt(0)")
    for p in range(2):
        A(f"v_pk_add_f32 {vr(36+2*p,2)}, {vr(36+2*p,2)}, {vr(40+2*p,2)}")
        A(f"v_pk_add_f32 {vr(44+2*p,2)}, {vr(44+2*p,2)}, {vr(48+2*p,2)}")
    for p in range(2):
        A(f"v_pk_add_f32 {vr(36+2*p,2)}, {vr(36+2*p,2)}, {vr(44+2*p,2)}")
    A("s_cmp_eq_u32 s4, 1")
    A("s_cbranch_scc1 k12c_sc1")
    A("s_cmp_eq_u32 s4, 2")
    A("s_cbranch_scc1 k12c_sc2")
    A("v_add_f32 v52, v52, v53")
    A("v_add_f32 v54, v54, v55")
    A("v_add_f32 v52, v52, v54")
    A("v_cmp_eq_u32 vcc, 63, v1")
    A("v_cndmask_b32 v52, 0, v52, vcc")
    A("v_sub_f32 v39, v39, v52")
    for i in range(4):
        A(f"ds_write_b32 v28, v{36+i} offset:{KG_IMG + 4*(3-i)}")
    A("s_branch k12c_sc_done")
    A.label("k12c_sc1")
    A("v_readlane_b32 s10, v36, 32")
    A("v_cmp_eq_u32 vcc, 31, v1")
    A("v_mov_b32 v52, s10")
    A("v_cndmask_b32 v52, 0, v52, vcc")
    A("v_sub_f32 v39, v39, v52")
    for i in range(4):
        A(f"ds_write_b32 v{29 if i < 2 else 30}, v{36+i} offset:{KG_IMG + 512*(i%2)}")
    A("s_branch k12c_sc_done")
    A.label("k12c_sc2")
    A("s_mov_b64 exec, 1")
    A(f"v_mov_b32 v52, {KG_K1024}")
    A("ds_write_b32 v52, v36")
    A("v_mov_b32 v36, 0")
    A("s_mov_b32 exec_lo, -1")
    A("s_mov_b32 exec_hi, 0x0000ffff")
    A(f"ds_write_b32 v31, v36 offset:{KG_IMG + 96}")
    A("s_mov_b32 exec_hi, 0")
    for i in range(1, 4):
        A(f"ds_write_b32 v31, v{36+i} offset:{KG_IMG + 32*(3-i)}")
    A("s_mov_b64 exec, -1")
    A.label("k12c_sc_done")
    A("s_waitcnt lgkmcnt(0)")
    A("s_barrier")
    A("v_lshlrev_b32 v10, 5, v0")
    A(f"v_mov_b32 v11, {KG_K1024}")
    A("ds_read_b32 v161, v11")
    A("v_cmp_gt_u32 vcc, 136, v0")
    A("s_and_saveexec_b64 s[12:13], vcc")
    A("s_cbranch_execz k12c_cv_done")
    for q in range(3):
        A(f"ds_read_b128 {vr(36+4*q,4)}, v10 offset:{KG_IMG + 16*q}")
    A("s_waitcnt lgkmcnt(0)")
    for c in range(4):
        for j in range(4):
            A(f"v_cvt_pk_bf16_f32 v{48+4*c+j}, v{36+c+2*j}, v{37+c+2*j}")
        A(f"ds_write_b128 v9, {vr(48+4*c,4)} offset:{KG_TAPC + 2176*c}")
    A.label("k12c_cv_done")
    A("s_mov_b64 exec, -1")
    A("s_waitcnt lgkmcnt(0)")
    srd(A, 48, P_WS, ST1_OFF, ST1_SZ)
    srd(A, 52, P_WS, XT_OFF, XT_SZ)
    srd(A, 56, P_WS, MOD_OFF, MOD_SZ)
    srd(A, 60, P_WS, X2T_OFF, XT_SZ)
    A("s_barrier")
    TF, DF, ACC = 104, 32, 64
    A("v_lshlrev_b32 v6, 4, v0")
    A("v_and_b32 v3, 15, v1")
    A("v_lshrrev_b32 v4, 4, v1")
    A("v_lshlrev_b32 v5, 3, v4")
    A("v_sub_u32 v5, v5, v3")
    A("v_add_u32 v5, 15, v5")
    A("v_and_b32 v8, 3, v5")
    A("v_sub_u32 v5, v5, v8")
    A("v_lshlrev_b32 v5, 1, v5")
    A("v_mul_u32_u24 v8, 2176, v8")
    A("v_add_u32 v5, v5, v8")
    A(f"v_add_u32 v5, {KG_TAPC}, v5")

    def tfr(dst, byteoff):
        assert byteoff % 8 == 0 and byteoff // 8 + 1 <= 255
        A(f"ds_read2_b64 {vr(dst,4)}, v5 offset0:{byteoff//8} offset1:{byteoff//8+1}")
    A("s_cmp_eq_u32 s4, 2")
    A("s_cbranch_scc1 k12c_tf2")
    A("s_cmp_eq_u32 s4, 3")
    A("s_cbranch_scc1 k12c_tf3")
    for k in range(9):
        tfr(TF+4*k, 64*k)
    A("s_branch k12c_tfx")
    A.label("k12c_tf2")
    for q in range(2):
        for k in range(3):
            tfr(TF+4*(3*q+k), 640 + 256*q + 64*k)
    A("s_branch k12c_tfx")
    A.label("k12c_tf3")
    A("v_add_u32 v5, 1152, v5")
    for q in range(4):
        for k in range(3):
            tfr(TF+4*(3*q+k), 256*q + 64*k)
    A.label("k12c_tfx")
    A("s_waitcnt lgkmcnt(0)")
    A("s_barrier")
    for j in range(4):
        A(f"v_mov_b32 v{12+j}, 0")
    for (B, n) in ((HB, 51), (S3B, 80), (H2B, 39), (S5B, 79), (S7B, 64), (S9B, 63)):
        A(f"v_cmp_gt_u32 vcc, {n}, v0")
        A("s_and_saveexec_b64 s[12:13], vcc")
        A(f"s_cbranch_execz k12c_z_{B}")
        A(f"ds_write_b128 v6, v[12:15] offset:{B}")
        A.label(f"k12c_z_{B}")
        A("s_mov_b64 exec, s[12:13]")
    A("v_lshrrev_b32 v7, 4, v0")
    A("v_lshl_add_u32 v7, v7, 4, v6")
    A("v_add_u32 v16, 47, v0")
    A("v_lshrrev_b32 v16, 4, v16")
    A("v_lshl_add_u32 v16, v16, 4, v6")
    A("v_add_u32 v17, 46, v0")
    A("v_lshrrev_b32 v17, 4, v17")
    A("v_lshl_add_u32 v17, v17, 4, v6")
    A("v_lshlrev_b32 v5, 6, v0")
    A("s_lshl_b32 s9, s5, 12")
    A("s_lshl_b32 s6, s5, 2")
    A("s_waitcnt lgkmcnt(0)")
    stamp(A, 3)
    wait_cnt(A, 72, CNT_B, "chAB", 6, both=True)
    stamp(A, 4)
    A("buffer_load_dwordx4 v[152:155], v6, s[52:55], s9 offen sc1")
    for j in range(4):
        A(f"buffer_load_dwordx4 {vr(40+4*j,4)}, v5, s[48:51], 0 offen offset:{16*j} sc1")
    A("buffer_load_dword v20, off, s[56:59], s6 sc1")
    A("buffer_load_dword v18, off, s[56:59], s6 offset:1792 sc1")
    A("buffer_load_dword v162, off, s[56:59], s6 offset:3584 sc1")
    HF = 24
    A("s_waitcnt vmcnt(3)")
    for j in range(4):
        unpack2(A, HF+2*j, HF+2*j+1, 152+j)
    for j in range(8):
        A(f"v_sub_f32 v{HF+j}, v{HF+j}, v{40+2*j}")
    for j in range(4):
        A(f"v_cvt_pk_bf16_f32 v{8+j}, v{HF+2*j}, v{HF+2*j+1}")
    for j in range(4):
        unpack2(A, HF+2*j, HF+2*j+1, 8+j)
    for j in range(8):
        A(f"v_mul_f32 v{HF+j}, v{HF+j}, v{41+2*j}")
    for j in range(4):
        A(f"v_cvt_pk_bf16_f32 v{8+j}, v{HF+2*j}, v{HF+2*j+1}")
    for j in range(4):
        unpack2(A, HF+2*j, HF+2*j+1, 8+j)
    A("s_waitcnt vmcnt(0)")
    A("v_add_f32 v18, 1.0, v18")
    round_bf16(A, 18, 18)
    for j in range(4):
        A(f"v_pk_mul_f32 {vr(HF+2*j,2)}, {vr(HF+2*j,2)}, v[18:19] op_sel_hi:[1,0]")
    for j in range(4):
        A(f"v_cvt_pk_bf16_f32 v{8+j}, v{HF+2*j}, v{HF+2*j+1}")
    for j in range(4):
        unpack2(A, HF+2*j, HF+2*j+1, 8+j)
    for j in range(4):
        A(f"v_pk_add_f32 {vr(HF+2*j,2)}, {vr(HF+2*j,2)}, v[20:21] op_sel_hi:[1,0]")
    for j in range(4):
        A(f"v_cvt_pk_bf16_f32 v{8+j}, v{HF+2*j}, v{HF+2*j+1}")
    A(f"ds_write_b128 v7, v[8:11] offset:{HB + 816}")
    for j in range(4):
        unpack2(A, HF+2*j, HF+2*j+1, 8+j)
    A("s_waitcnt lgkmcnt(0)")
    A("s_barrier")
    stamp(A, 5)
    A(f"ds_read_b64 v[8:9], v17 offset:{HB + 744}")
    A(f"ds_read_b128 v[10:13], v16 offset:{HB + 752}")
    A(f"ds_read_b64 v[14:15], v7 offset:{HB + 816}")
    E, Q, S4, S3, S5, S7, S9 = 32, 48, 62, 74, 84, 48, 32
    A("s_waitcnt lgkmcnt(0)")
    for j in range(8):
        unpack2(A, E+2*j, E+2*j+1, 8+j)
    for j in range(4):
        A(f"v_mov_b32 v{96+j}, v{9+j}")
    for k in range(14):
        A(f"v_add_f32 v{Q+k}, v{E+k}, v{E+k+1}")
    for m in range(10):
        A(f"v_add_f32 v{S3+m}, v{Q+m+3}, v{E+m+5}")
    for k in range(0, 12, 2):
        A(f"v_pk_add_f32 {vr(S4+k,2)}, {vr(Q+k,2)}, {vr(Q+k+2,2)}")
    for m in range(0, 10, 2):
        A(f"v_pk_add_f32 {vr(S5+m,2)}, {vr(S4+m+2,2)}, {vr(E+m+6,2)}")
    for m in range(-1, 8):
        A(f"v_add_f32 v{S7+m+1}, v{S4+m+1}, v{S3+m+2}")
    for m in range(0, 8, 2):
        A(f"v_pk_add_f32 {vr(S9+m,2)}, {vr(S4+m,2)}, {vr(S5+m+2,2)}")
    outs = ((S3, 8), (S5, 12), (S7+1, 40), (S9, 44), (S7, 60))
    for (src, t) in outs:
        for j in range(4):
            A(f"v_cvt_pk_bf16_f32 v{t+j}, v{src+2*j}, v{src+2*j+1}")
    groups = ((225, ((8, S3B, S3P), (96, H2B, H2P))), (193, ((12, S5B, S5P),)),
              (129, ((40, S7B, S7P), (44, S9B, S9P), (60, WB, WP))))
    for gi, (lim, items) in enumerate(groups):
        A(f"v_cmp_gt_u32 vcc, {lim}, v0")
        A("s_and_saveexec_b64 s[12:13], vcc")
        A(f"s_cbranch_execz k12c_w{gi}")
        for (t, B, P) in items:
            A(f"ds_write_b128 v6, {vr(t,4)} offset:{B + 2*P - 16}")
        A.label(f"k12c_w{gi}")
        A("s_mov_b64 exec, s[12:13]")
    A("s_waitcnt lgkmcnt(0)")
    A("v_bfe_u32 v8, v1, 2, 2")
    A("v_and_b32 v9, 3, v1")
    A("v_lshl_add_u32 v10, v4, 3, v8")
    A("s_cmp_eq_u32 s4, 2")
    A("s_cbranch_scc1 k12c_seg1")
    A("s_cmp_eq_u32 s4, 3")
    A("s_cbranch_scc1 k12c_seg23")
    A("s_lshl_b32 s7, s4, 4")
    A("v_lshlrev_b32 v11, 3, v4")
    A("v_add_u32 v11, s7, v11")
    A("v_mul_u32_u24 v12, 272, v3")
    A("v_lshl_add_u32 v12, v11, 1, v12")
    A("v_cmp_le_u32 vcc, 16, v11")
    A("v_add_u32 v13, 16, v12")
    A("v_cndmask_b32 v13, v12, v13, vcc")
    NS = 12

    def rd0(s):
        z = 32*s + 112
        A(f"ds_read_b128 {vr(DF+4*(s%8),4)}, v{13 if s % 4 == 0 else 12} offset:{HB + 2*z + 16*(z >> 7)}")
    PF = 4
    A("s_barrier")
    for s in range(PF):
        rd0(s)
    first = [True] * 4
    for s in range(NS):
        if s + PF < NS:
            rd0(s + PF)
            A(f"s_waitcnt lgkmcnt({PF})")
        else:
            A(f"s_waitcnt lgkmcnt({NS - 1 - s})")
        for a in range(4):
            k = s - a
            if 0 <= k <= 8:
                c = "0" if first[a] else vr(ACC+4*a, 4)
                first[a] = False
                A(f"v_mfma_f32_16x16x32_bf16 {vr(ACC+4*a,4)}, {vr(TF+4*k,4)}, {vr(DF+4*(s%8),4)}, {c}")
    A("v_mul_u32_u24 v12, 528, v3")
    A("v_lshl_add_u32 v12, v4, 4, v12")
    A("s_lshl_b32 s7, s4, 6")
    A("v_add_u32 v12, s7, v12")
    for a in range(4):
        A(f"ds_write_b128 v12, {vr(ACC+4*a,4)} offset:{Y0B + 128*a}")
    A("s_branch k12c_epi")

    def seg_tr(ntile, phis, seqs, vbase, ustride, accbase, tfbase):
        items = [(phi, q) for phi in phis for q in range(len(seqs))]
        first = [True] * ntile

        def rd(n):
            phi, q = items[n]
            for hf in range(2):
                imm = ustride * (16*phi + 4*hf - 80) + seqs[q]
                assert 0 <= imm < 65536
                A(f"ds_read_b64_tr_b16 {vr(DF+4*(n%8)+2*hf,2)}, v{vbase} offset:{imm}")
        PFN = 4
        for n in range(min(PFN, len(items))):
            rd(n)
        for n in range(len(items)):
            if n + PFN < len(items):
                rd(n + PFN)
                A(f"s_waitcnt lgkmcnt({2*PFN})")
            else:
                A(f"s_waitcnt lgkmcnt({2*(len(items)-1-n)})")
            phi, q = items[n]
            for k in range(3):
                tau = phi - 2*k
                if 0 <= tau < ntile:
                    c = "0" if first[tau] else vr(accbase+4*tau, 4)
                    first[tau] = False
                    A(f"v_mfma_f32_16x16x32_bf16 {vr(accbase+4*tau,4)}, {vr(DF+4*(n%8),4)}, {vr(tfbase+4*(3*q+k),4)}, {c}")
        assert not any(first)

    A.label("k12c_seg1")
    A("v_mul_u32_u24 v12, 112, v9")
    A("v_add_u32 v12, v12, v10")
    A("v_lshlrev_b32 v12, 3, v12")
    A("s_barrier")
    seg_tr(7, range(11), [S3B + 2*S3P, H2B + 2*H2P], 12, 8, ACC, TF)
    A("v_mul_u32_u24 v12, 112, v4")
    A("v_add_u32 v12, v12, v3")
    A("v_lshlrev_b32 v12, 4, v12")
    for t in range(7):
        A(f"ds_write_b128 v12, {vr(ACC+4*t,4)} offset:{Y1B + 256*t}")
    A("s_branch k12c_epi")

    A.label("k12c_seg23")
    A("v_lshrrev_b32 v12, 1, v9")
    A("v_mul_u32_u24 v12, 96, v12")
    A("v_add_u32 v12, v12, v10")
    A("v_lshlrev_b32 v12, 4, v12")
    A("v_and_b32 v13, 1, v9")
    A("v_lshl_add_u32 v12, v13, 3, v12")
    A("v_lshlrev_b32 v13, 5, v10")
    A("v_lshl_add_u32 v13, v9, 3, v13")
    A("s_barrier")
    seg_tr(6, range(10), [S5B + 2*S5P, S3B + 2*S3P - 8], 12, 16, ACC, TF)
    seg_tr(4, range(3, 8), [S9B + 2*S9P, S7B + 2*S7P - 16], 13, 32, ACC + 24, TF + 24)
    A("v_lshrrev_b32 v12, 1, v4")
    A("v_mul_u32_u24 v12, 96, v12")
    A("v_add_u32 v12, v12, v3")
    A("v_lshlrev_b32 v12, 5, v12")
    A("v_and_b32 v13, 1, v4")
    A("v_lshl_add_u32 v12, v13, 4, v12")
    for t in range(6):
        A(f"ds_write_b128 v12, {vr(ACC+4*t,4)} offset:{Y2B + 512*t}")
    A("v_lshlrev_b32 v13, 6, v3")
    A("v_lshl_add_u32 v13, v4, 4, v13")
    for t in range(4):
        A(f"ds_write_b128 v13, {vr(ACC+24+4*t,4)} offset:{Y3B + 1024*t}")
    A.label("k12c_epi")
    stamp(A, 6)
    A("v_lshlrev_b32 v12, 5, v0")
    A("v_lshrrev_b32 v13, 4, v0")
    A("v_lshl_add_u32 v13, v13, 4, v12")
    A(f"v_add_u32 v13, {Y0B}, v13")
    A(f"v_add_u32 v14, {Y1B - 1024}, v12")
    A("v_cmp_le_u32 vcc, 32, v0")
    A("v_cndmask_b32 v14, 0, v14, vcc")
    A(f"v_add_u32 v15, {Y2B - 2048}, v12")
    A("v_cmp_le_u32 vcc, 64, v0")
    A("v_cndmask_b32 v15, 0, v15, vcc")
    A(f"v_add_u32 v16, {Y3B - 4096}, v12")
    A("v_cmp_le_u32 vcc, 128, v0")
    A("v_cndmask_b32 v16, 0, v16, vcc")
    A(f"v_add_u32 v17, {WB + 2*WP - 2048}, v6")
    A("v_cmp_le_u32 vcc, 127, v0")
    A("v_cndmask_b32 v17, 0, v17, vcc")
    A("s_waitcnt lgkmcnt(0)")
    A("s_barrier")
    for n, a in enumerate((13, 14, 15, 16)):
        A(f"ds_read_b128 {vr(32+8*n,4)}, v{a}")
        A(f"ds_read_b128 {vr(36+8*n,4)}, v{a} offset:16")
    A("ds_read_b128 v[64:67], v17")
    A("v_mov_b32 v18, v161")
    A("v_lshlrev_b32 v20, 16, v160")
    for j in range(4):
        A(f"v_pk_mul_f32 {vr(80+2*j,2)}, {vr(HF+2*j,2)}, v[20:21] op_sel_hi:[1,0]")
    for j in range(4):
        A(f"v_cvt_pk_bf16_f32 v{88+j}, v{80+2*j}, v{81+2*j}")
    for j in range(4):
        unpack2(A, 80+2*j, 81+2*j, 88+j)
    A("s_waitcnt lgkmcnt(5)")
    for j in range(4):
        A(f"v_pk_add_f32 {vr(32+2*j,2)}, {vr(32+2*j,2)}, {vr(40+2*j,2)}")
    A("s_waitcnt lgkmcnt(1)")
    for j in range(4):
        A(f"v_pk_add_f32 {vr(48+2*j,2)}, {vr(48+2*j,2)}, {vr(56+2*j,2)}")
    A("s_waitcnt lgkmcnt(0)")
    for j in range(4):
        unpack2(A, 68+2*j, 69+2*j, 64+j)
    for j in range(4):
        A(f"v_pk_add_f32 {vr(32+2*j,2)}, {vr(32+2*j,2)}, {vr(48+2*j,2)}")
    for j in range(4):
        A(f"v_pk_fma_f32 {vr(32+2*j,2)}, {vr(68+2*j,2)}, v[18:19], {vr(32+2*j,2)} op_sel_hi:[1,0,1]")

    def rnd(base):
        for j in range(4):
            A(f"v_cvt_pk_bf16_f32 v{88+j}, v{base+2*j}, v{base+2*j+1}")
        for j in range(4):
            unpack2(A, base+2*j, base+2*j+1, 88+j)
    rnd(32)
    for j in range(4):
        A(f"v_pk_add_f32 {vr(32+2*j,2)}, {vr(32+2*j,2)}, {vr(80+2*j,2)}")
    rnd(32)
    for j in range(4):
        A(f"v_pk_mul_f32 {vr(32+2*j,2)}, {vr(32+2*j,2)}, v[162:163] op_sel_hi:[1,0]")
    rnd(32)
    for j in range(4):
        unpack2(A, 92+2*j, 93+2*j, 152+j)
    for j in range(4):
        A(f"v_pk_add_f32 {vr(32+2*j,2)}, {vr(32+2*j,2)}, {vr(92+2*j,2)}")
    for j in range(4):
        A(f"v_cvt_pk_bf16_f32 v{88+j}, v{32+2*j}, v{33+2*j}")
    A("buffer_store_dwordx4 v[88:91], v6, s[60:63], s9 offen")
    finish(A, 0)


def gen_k12(A):
    prologue(A, "k12_kernel", K12_NWG)
    A(f"s_cmp_ge_u32 s2, {B_W2}")
    A("s_cbranch_scc1 k12_w2")
    A(f"s_cmp_ge_u32 s2, {B_LN}")
    A("s_cbranch_scc1 k12_ln")
    A(f"s_cmp_ge_u32 s2, {B_ST}")
    A("s_cbranch_scc1 k12_st")
    A(f"s_cmp_ge_u32 s2, {B_MOD}")
    A("s_cbranch_scc1 k12_mod")
    r_chan(A)
    r_ln(A)
    r_stats(A)
    r_mod(A)
    r_w2(A)
    r_wprep(A)
    A.label("k12_kernel_done")
    finish(A, 0)
    A.label("k12_kernel_exit")
    A("s_endpgm")


K12 = ("k12_kernel", gen_k12, K12_NWG, 256, K12_LDS, 164, 0)
```

```python
import os
from gen import *
from gen12 import SPIN_MAX, SYNC_OFF, SYNC_SZ

K34_NWG = 256
STATS = 131072
LFLAG = STATS + 1024
K34_LDS = STATS + 1024 + 256


def gen_k34(A):
    prologue(A, "k34_kernel", K34_NWG)
    A("s_and_b32 s5, s2, 7")
    A("s_lshr_b32 s6, s2, 3")
    A("s_and_b32 s7, s5, 1")
    A("s_lshl_b32 s7, s7, 3")
    A("s_and_b32 s8, s6, 7")
    A("s_add_u32 s7, s7, s8")
    A("s_lshr_b32 s8, s5, 1")
    A("s_lshl_b32 s8, s8, 2")
    A("s_lshr_b32 s9, s6, 3")
    A("s_add_u32 s8, s8, s9")
    srd(A, 48, P_WS, X2T_OFF, XT_SZ)
    srd(A, 52, P_WS, W1F_OFF, W1F_SZ)
    srd(A, 56, P_WS, SB_OFF, SB_SZ)
    srd(A, 60, P_WS, HHF_OFF, HHF_SZ)
    srd(A, 64, P_WS, W2F_OFF, W2F_SZ)
    srd(A, 72, P_WS, SYNC_OFF, SYNC_SZ)
    A("v_lshrrev_b32 v3, 4, v1")
    A("v_and_b32 v4, 15, v1")
    A("v_lshlrev_b32 v5, 1, v3")
    A("v_xor_b32 v6, v4, v5")
    A("v_lshlrev_b32 v6, 4, v6")
    A("v_lshl_add_u32 v6, v3, 12, v6")
    A("s_and_b32 s10, s4, 1")
    A("s_lshl_b32 s10, s10, 7")
    A("v_xor_b32 v6, s10, v6")
    A("s_lshl_b32 s11, s4, 14")
    A("s_lshl_b32 s12, s7, 8")
    A("s_add_u32 s11, s11, s12")
    A("s_lshl_b32 s12, s4, 10")
    issued = []
    NS1 = 4

    def dma(i):
        A("s_mov_b32 m0, s12")
        A("buffer_load_dwordx4 v6, s[48:51], s11 offen lds")
        issued.append(("D", i))
        if i < 13:
            A(f"s_add_u32 s11, s11, {8*16384}")
            A("s_add_u32 s12, s12, 8192")
    for i in range(NS1):
        dma(i)
    AD, AD2, BR, CO, WF, ACC = 8, 16, 24, 40, 56, 168
    X2R, GBR = 232, 236
    A("v_lshrrev_b32 v5, 2, v1")
    A("v_and_b32 v2, 7, v5")
    A("v_lshlrev_b32 v5, 8, v5")
    A("v_and_b32 v40, 3, v1")
    A("v_lshl_add_u32 v5, v40, 3, v5")
    for t in range(8):
        A(f"v_xor_b32 v{AD+t}, {t}, v2")
        A(f"v_lshl_add_u32 v{AD+t}, v{AD+t}, 5, v5")
        A(f"v_add_u32 v{AD2+t}, 0x10000, v{AD+t}")
    A("v_lshlrev_b32 v250, 4, v1")
    A("s_cmp_ge_u32 s8, 7")
    A("s_cselect_b32 s16, 1, 0")
    A("s_mul_i32 s17, s16, 7")
    A("s_sub_u32 s17, s8, s17")

    steps = [(k, t) for k in range(14) for t in range(8)]
    PF = 3
    WPF = 4
    NW2A = int(os.environ.get('NW2A', '26'))

    def rdB(n):
        k, t = steps[n]
        for hf in range(2):
            a = (AD if k < 8 else AD2) + t
            A(f"ds_read_b64_tr_b16 {vr(BR+4*(n%4)+2*hf,2)}, v{a} offset:{(k%8)*8192 + hf*4096}")

    def after(tag):
        idx = max(i for i, t_ in enumerate(issued) if t_ == tag)
        return len(issued) - 1 - idx

    def ldW(k):
        for m in range(2):
            n = 2*k + m
            A(f"buffer_load_dwordx4 {vr(WF+4*n,4)}, v250, s[52:55], s14 offen offset:{(n%4)*1024}")
            issued.append(("W", k))
        if k % 2 == 1:
            A("s_add_u32 s14, s14, 4096")

    def ldW2(n2):
        A(f"buffer_load_dwordx4 {vr(WF+4*n2,4)}, v250, s[64:67], s22 offen offset:{1024*(n2%4)}")
        issued.append(("W2", n2))
        if n2 % 4 == 3:
            A("s_add_u32 s22, s22, 4096")

    def w2_base():
        A("s_mul_i32 s22, s17, 56")
        A("s_mul_i32 s23, s4, 7")
        A("s_add_u32 s22, s22, s23")
        A("s_lshl_b32 s22, s22, 12")

    def mainloop(body, need_w):
        for n in range(PF):
            rdB(n)
        for n, (k, t) in enumerate(steps):
            if n + PF == 8 * NS1:
                A(f"s_waitcnt vmcnt({after(('D', 13))})")
                A("s_barrier")
            if n + PF < len(steps):
                rdB(n + PF)
                lg = 2 * PF
            else:
                lg = 2 * (len(steps) - 1 - n)
            if t == 0 and need_w:
                A(f"s_waitcnt vmcnt({after(('W', k))}) lgkmcnt({lg})")
            else:
                A(f"s_waitcnt lgkmcnt({lg})")
            body(n, k, t)
            if n % 2 == 0 and NS1 + n // 2 < 14:
                dma(NS1 + n // 2)
            if need_w and n in (1, 3):
                ldW(2 + n // 2)
            if need_w and t == 1 and k + WPF <= 13 and k >= 0 and n > 3:
                ldW(k + WPF)
            if need_w and n == 5:
                ldW(WPF)
            if need_w and n == 40:
                for a in range(4):
                    A(f"buffer_load_dwordx4 {vr(CO+4*a,4)}, v251, s[56:59], s19 offen")
                    issued.append(("CO", a))
                    if a < 3:
                        A("s_add_u32 s19, s19, 7168")
            if k >= 1 and t in (3, 5) and (not need_w or 2*(k-1) + (t == 5) < NW2A):
                ldW2(2*(k-1) + (t == 5))

    def g2_prefetch(early):
        if early:
            ldW2(26)
            ldW2(27)
        A("v_bfe_u32 v244, v1, 2, 2")
        A("v_lshl_add_u32 v244, v3, 4, v244")
        A("s_min_u32 s18, s17, 6")
        A("s_lshl_b32 s18, s18, 6")
        A("s_and_b32 s19, s4, 1")
        A("s_lshl_b32 s20, s19, 3")
        A("s_add_u32 s18, s18, s20")
        A("v_add_u32 v244, s18, v244")
        A("s_lshr_b32 s20, s4, 1")
        A("s_lshl_b32 s21, s16, 2")
        A("s_add_u32 s21, s21, s20")
        A("v_bfe_u32 v245, v1, 2, 2")
        A("v_xor_b32 v246, s21, v245")
        A("v_xor_b32 v247, 4, v246")
        A("v_and_b32 v245, 3, v1")
        A("v_lshlrev_b32 v245, 3, v245")
        A("v_lshl_add_u32 v245, v244, 8, v245")
        A("v_lshl_add_u32 v246, v246, 5, v245")
        A("v_lshl_add_u32 v247, v247, 5, v245")
        A(f"ds_read_b64_tr_b16 {vr(X2R,2)}, v246")
        A(f"ds_read_b64_tr_b16 {vr(X2R+2,2)}, v247 offset:1024")
        srd(A, 68, P_WS, MOD_OFF, MOD_SZ)
        A("v_lshlrev_b32 v244, 6, v3")
        A("s_lshl_b32 s23, s18, 2")
        A(f"s_add_u32 s23, s23, {2240*4}")
        for j in range(2):
            A(f"buffer_load_dwordx4 {vr(GBR+4*j,4)}, v244, s[68:71], s23 offen offset:{16*j}")

    w2_base()
    A("s_cmp_eq_u32 s4, 0")
    A("s_cbranch_scc1 k34_stats")
    A("s_mul_i32 s13, s8, 7")
    A("s_add_u32 s13, s13, s4")
    A("s_sub_u32 s13, s13, 1")
    A("v_lshlrev_b32 v5, 4, v3")
    A("s_lshl_b32 s14, s13, 6")
    common = list(issued)
    A("s_mul_i32 s15, s13, 28672")
    A("s_mov_b32 s19, s14")
    A("s_mov_b32 s14, s15")
    ldW(0)
    ldW(1)
    A("v_mov_b32 v251, v5")
    stamp(A, 1)
    A(f"s_waitcnt vmcnt({after(('D', NS1-1))})")
    A("s_barrier")
    stamp(A, 2)

    def gemm_body(n, k, t):
        for m in range(2):
            acc = ACC + 32*m + 4*t
            c = "0" if k == 0 else vr(acc, 4)
            A(f"v_mfma_f32_16x16x32_bf16 {vr(acc,4)}, {vr(WF+4*(2*k+m),4)}, {vr(BR+4*(n%4),4)}, {c}")
    mainloop(gemm_body, True)
    stamp(A, 3)
    g2_prefetch(False)
    A(f"v_mov_b32 v5, {LFLAG}")
    A(f"s_mov_b32 s78, {SPIN_MAX}")
    A.label("k34_stw")
    A("ds_read_b32 v2, v5")
    A("s_waitcnt lgkmcnt(0)")
    A("v_readfirstlane_b32 s79, v2")
    A("s_cmp_lg_u32 s79, 0")
    A("s_cbranch_scc1 k34_stw_done")
    A("s_sub_u32 s78, s78, 1")
    A("s_cmp_eq_u32 s78, 0")
    A("s_cbranch_scc1 k34_stw_done")
    A("s_sleep 2")
    A("s_branch k34_stw")
    A.label("k34_stw_done")
    stamp(A, 4)
    ST = 8
    A("v_lshlrev_b32 v5, 3, v4")
    A(f"v_add_u32 v5, {STATS}, v5")
    for t in range(8):
        A(f"ds_read_b64 {vr(ST+2*t,2)}, v5 offset:{128*t}")
    A("s_mul_i32 s14, s7, 448")
    A("s_lshr_b32 s15, s13, 1")
    A("s_add_u32 s14, s14, s15")
    A("s_lshl_b32 s14, s14, 10")
    A("s_and_b32 s15, s13, 1")
    A("s_lshl_b32 s15, s15, 9")
    A("s_add_u32 s14, s14, s15")
    A("v_and_b32 v248, 1, v3")
    A(f"v_mul_u32_u24 v248, {57344}, v248")
    A("v_lshrrev_b32 v249, 1, v3")
    A("v_lshl_add_u32 v248, v249, 8, v248")
    A("v_lshl_add_u32 v248, v4, 4, v248")
    A(f"v_mov_b32 v252, {f32(-LOG2E)}")
    A("v_mov_b32 v254, 1.0")
    SG, BG, SU, BU = CO, CO+4, CO+8, CO+12
    T = 24
    for t in range(8):
        A(f"s_waitcnt lgkmcnt({7-t})")
        st = vr(ST+2*t, 2)
        G, U = ACC + 4*t, ACC + 32 + 4*t
        rm = ST+2*t+1
        for j in range(4):
            A(f"v_fma_f32 v{T+j}, v{SG+j}, -v{rm}, v{BG+j}")
            A(f"v_fma_f32 v{T+4+j}, v{SU+j}, -v{rm}, v{BU+j}")
        for p in range(2):
            A(f"v_pk_fma_f32 {vr(T+2*p,2)}, {vr(G+2*p,2)}, {st}, {vr(T+2*p,2)} op_sel_hi:[1,0,1]")
            A(f"v_pk_fma_f32 {vr(T+4+2*p,2)}, {vr(U+2*p,2)}, {st}, {vr(T+4+2*p,2)} op_sel_hi:[1,0,1]")
        for p in range(2):
            A(f"v_pk_mul_f32 {vr(T+8+2*p,2)}, {vr(T+2*p,2)}, v[252:253] op_sel_hi:[1,0]")
        for j in range(4):
            A(f"v_exp_f32 v{T+8+j}, v{T+8+j}")
        for p in range(2):
            A(f"v_pk_mul_f32 {vr(T+2*p,2)}, {vr(T+2*p,2)}, {vr(T+4+2*p,2)}")
        for p in range(2):
            A(f"v_pk_add_f32 {vr(T+8+2*p,2)}, {vr(T+8+2*p,2)}, v[254:255] op_sel_hi:[1,0]")
        for j in range(4):
            A(f"v_rcp_f32 v{T+8+j}, v{T+8+j}")
        for p in range(2):
            A(f"v_pk_mul_f32 {vr(T+2*p,2)}, {vr(T+2*p,2)}, {vr(T+8+2*p,2)}")
        D0 = ACC + 4*(t & ~1) + 2*(t & 1)
        for p in range(2):
            A(f"v_cvt_pk_bf16_f32 v{D0+p}, v{T+2*p}, v{T+2*p+1}")
        if t % 2 == 1:
            b = ACC + 4*(t - 1)
            A(f"v_permlane16_swap_b32 v{b}, v{b+2}")
            A(f"v_permlane16_swap_b32 v{b+1}, v{b+3}")
            A(f"buffer_store_dwordx4 {vr(b,4)}, v248, s[60:63], s14 offen sc1")
            if t < 7:
                A(f"s_add_u32 s14, s14, {2*56*1024}")
    A("s_branch k34_sig")

    A.label("k34_stats")
    issued[:] = common
    for j in range(4):
        A(f"v_mov_b32 v{CO+j}, 0x3f803f80")
    A("v_mov_b32 v2, 0")
    A(f"v_mov_b32 v5, {LFLAG}")
    A("ds_write_b32 v5, v2")
    A(f"s_waitcnt vmcnt({after(('D', NS1-1))}) lgkmcnt(0)")
    A("s_barrier")
    stamp(A, 2)

    def stat_body(n, k, t):
        b = vr(BR+4*(n % 4), 4)
        acc = ACC + 4*t
        c = "0" if k == 0 else vr(acc, 4)
        A(f"v_mfma_f32_16x16x32_bf16 {vr(acc,4)}, {b}, {b}, {c}")
        acc = ACC + 32 + 4*t
        c = "0" if k == 0 else vr(acc, 4)
        A(f"v_mfma_f32_16x16x32_bf16 {vr(acc,4)}, {vr(CO,4)}, {b}, {c}")
    mainloop(stat_body, False)
    stamp(A, 3)
    A("v_and_b32 v5, 3, v4")
    A("v_cmp_eq_u32 s[24:25], 1, v5")
    A("v_cmp_eq_u32 s[26:27], 2, v5")
    A("v_cmp_eq_u32 s[28:29], 3, v5")
    A("v_lshrrev_b32 v5, 2, v4")
    A("v_cmp_eq_u32 s[30:31], v5, v3")
    A(f"v_mov_b32 v44, {f32(1.0/448)}")
    Qr, Mr, O = 8, 16, 24
    for t in range(8):
        g = ACC + 4*t
        A(f"v_cndmask_b32 v{Qr+t}, v{g}, v{g+1}, s[24:25]")
        A(f"v_cndmask_b32 v{Qr+t}, v{Qr+t}, v{g+2}, s[26:27]")
        A(f"v_cndmask_b32 v{Qr+t}, v{Qr+t}, v{g+3}, s[28:29]")
        A(f"v_mul_f32 v{Mr+t}, v{ACC+32+4*t}, v44")
    for t in range(8):
        A(f"v_mul_f32 v{Qr+t}, v{Qr+t}, v44")
    for t in range(8):
        A(f"v_fma_f32 v{Qr+t}, -v{Mr+t}, v{Mr+t}, v{Qr+t}")
    for t in range(8):
        A(f"v_max_f32 v{Qr+t}, 0, v{Qr+t}")
    for t in range(8):
        round_bf16(A, Qr+t, Qr+t)
        round_bf16(A, Mr+t, Mr+t)
    for t in range(8):
        A(f"v_add_f32 v{Qr+t}, {f32(1e-5)}, v{Qr+t}")
    for t in range(8):
        round_bf16(A, Qr+t, Qr+t)
    for t in range(8):
        A(f"v_sqrt_f32 v{Qr+t}, v{Qr+t}")
    for t in range(8):
        round_bf16(A, Qr+t, Qr+t)
    for t in range(8):
        A(f"v_rcp_f32 v{O+2*t}, v{Qr+t}")
    for t in range(8):
        A(f"v_mul_f32 v{O+1+2*t}, v{O+2*t}, v{Mr+t}")
    A("v_lshlrev_b32 v5, 3, v4")
    A(f"v_add_u32 v5, {STATS}, v5")
    A("s_mov_b64 exec, s[30:31]")
    for t in range(8):
        A(f"ds_write_b64 v5, {vr(O+2*t,2)} offset:{128*t}")
    A("s_mov_b64 exec, -1")
    A("s_waitcnt lgkmcnt(0)")
    A("v_mov_b32 v2, 1")
    A(f"v_mov_b32 v5, {LFLAG}")
    A("ds_write_b32 v5, v2")
    stamp(A, 4)
    g2_prefetch(True)

    A.label("k34_sig")
    A("s_waitcnt vmcnt(0) lgkmcnt(0)")
    stamp(A, 5)
    A("s_barrier")
    A("s_lshl_b32 s15, s7, 8")
    A("s_cmp_lg_u32 s4, 0")
    A("s_cbranch_scc1 k34_defer")
    if PROF:
        A("s_memrealtime s[82:83]")
    A("s_mov_b64 exec, 1")
    A("v_mov_b32 v2, 1")
    A("buffer_atomic_add v2, off, s[72:75], s15 sc1")
    A("s_mov_b64 exec, -1")
    A("s_cmp_ge_u32 s8, 14")
    A("s_cbranch_scc1 k34_wait_done")
    A(f"s_mov_b32 s78, {SPIN_MAX}")
    A.label("k34_wait")
    A(f"buffer_load_dword v2, off, s[72:75], s15 sc1")
    A("s_waitcnt vmcnt(0)")
    A("v_readfirstlane_b32 s79, v2")
    A("s_cmp_ge_u32 s79, 16")
    A("s_cbranch_scc1 k34_wait_done")
    A("s_sub_u32 s78, s78, 1")
    A("s_cmp_eq_u32 s78, 0")
    A("s_cbranch_scc1 k34_wait_done")
    A(f"s_sleep {os.environ.get('SLP', '2')}")
    A("s_branch k34_wait")
    A.label("k34_defer")
    for n2 in range(NW2A, 28):
        ldW2(n2)
    A.label("k34_wait_done")
    A("s_cmp_ge_u32 s8, 14")
    A("s_cbranch_scc1 k34_kernel_done")
    A("s_barrier")
    stamp(A, 6)
    if PROF:
        A("s_cmp_lg_u32 s4, 0")
        A("s_cbranch_scc1 k34_pr1")
        A("s_memrealtime s[92:93]")
        A.label("k34_pr1")
    A("s_lshl_b32 s22, s7, 3")
    A("s_lshl_b32 s23, s16, 2")
    A("s_add_u32 s22, s22, s23")
    A("s_mul_i32 s22, s22, 56")
    A("s_mul_i32 s23, s4, 7")
    A("s_add_u32 s22, s22, s23")
    A("s_lshl_b32 s22, s22, 10")
    for tt in range(4):
        A(f"s_add_u32 s{24+tt}, s22, {tt*57344}")
        A(f"s_add_u32 s{28+tt}, s22, {tt*57344 + 4096}")
    BB = 8
    NB = 6
    items = [(h, k) for h in range(2) for k in range(7)]

    def ldB(n):
        h, k = items[n]
        for q in range(2):
            tt = 2*h + q
            A(f"buffer_load_dwordx4 {vr(BB+8*(n%NB)+4*q,4)}, v250, s[60:63], s{(24 if k < 4 else 28)+tt} offen offset:{1024*(k%4)} sc1")
    A("s_lshl_b32 s22, s4, 10")
    A("v_add_u32 v244, s22, v250")
    A("v_add_u32 v245, 0x10000, v244")
    for n in range(NB):
        ldB(n)
    for n, (h, k) in enumerate(items):
        done = min(len(items), n + NB)
        A(f"s_waitcnt vmcnt({2*(done - n - 1)})")
        for q in range(2):
            tt = 2*h + q
            for jt in range(4):
                acc = ACC + 16*tt + 4*jt
                c = "0" if k == 0 else vr(acc, 4)
                A(f"v_mfma_f32_16x16x32_bf16 {vr(acc,4)}, {vr(WF+16*k+4*jt,4)}, {vr(BB+8*(n%NB)+4*q,4)}, {c}")
        if n + NB < len(items):
            ldB(n + NB)
        if h == 1 and k < 4:
            for s_ in (2*k, 2*k + 1):
                A(f"ds_write_b128 v244, {vr(ACC+4*s_,4)} offset:{s_*8192}")
    for s_ in range(8, 16):
        A(f"ds_write_b128 v245, {vr(ACC+4*s_,4)} offset:{(s_%8)*8192}")
    A("s_waitcnt lgkmcnt(0)")
    A("s_barrier")
    A("s_lshl_b32 s22, s4, 14")
    A("v_add_u32 v244, s22, v250")
    R = 56
    for h in range(2):
        for src in range(8):
            A(f"ds_read_b128 {vr(R+32*h+4*src,4)}, v244 offset:{h*8192 + src*1024}")
    srd(A, 48, P_OUT, 0, XT_SZ)
    A("v_mul_u32_u24 v246, 896, v4")
    A("v_lshl_add_u32 v246, v3, 5, v246")
    A("s_lshl_b32 s22, s7, 3")
    A("s_add_u32 s22, s22, s21")
    A(f"s_mul_i32 s22, s22, {16*896}")
    A("s_lshl_b32 s23, s18, 1")
    A("s_add_u32 s22, s22, s23")
    X2 = 8
    for j in range(4):
        unpack2(A, X2+2*j, X2+2*j+1, X2R+j)
    for h in range(2):
        A(f"s_waitcnt lgkmcnt({8*(1-h)})")
        b = R + 32*h
        for st in (4, 2, 1):
            for q in range(st):
                for p in range(2):
                    A(f"v_pk_add_f32 {vr(b+4*q+2*p,2)}, {vr(b+4*q+2*p,2)}, {vr(b+4*(q+st)+2*p,2)}")
    O = 16
    for h in range(2):
        for p in range(2):
            A(f"v_cvt_pk_bf16_f32 v{24+2*h+p}, v{R+32*h+2*p}, v{R+32*h+2*p+1}")
    for j in range(4):
        unpack2(A, O+2*j, O+2*j+1, 24+j)
    for p in range(4):
        A(f"v_pk_mul_f32 {vr(O+2*p,2)}, {vr(O+2*p,2)}, {vr(GBR+2*p,2)}")
    for j in range(4):
        A(f"v_cvt_pk_bf16_f32 v{24+j}, v{O+2*j}, v{O+2*j+1}")
    for j in range(4):
        unpack2(A, O+2*j, O+2*j+1, 24+j)
    for p in range(4):
        A(f"v_pk_add_f32 {vr(O+2*p,2)}, {vr(O+2*p,2)}, {vr(X2+2*p,2)}")
    for j in range(4):
        A(f"v_cvt_pk_bf16_f32 v{24+j}, v{O+2*j}, v{O+2*j+1}")
    A("buffer_store_dwordx4 v[24:27], v246, s[48:51], s22 offen")
    A.label("k34_kernel_done")
    finish(A, 2)
    A.label("k34_kernel_exit")
    A("s_endpgm")


K34 = ("k34_kernel", gen_k34, K34_NWG, 512, K34_LDS, 256, 0)
```
